```python
import torch

def _softmax(x, axis=-1):
    return torch.softmax(x, dim=axis)
def _gelu(x):
    return torch.nn.functional.gelu(x, approximate="tanh")
def _silu(x):
    return torch.nn.functional.silu(x)
def _sigmoid(x):
    return torch.sigmoid(x)
def _layernorm(x, axis=-1, eps=1e-5):
    m = x.mean(dim=axis, keepdim=True)
    v = x.var(dim=axis, keepdim=True, unbiased=False)
    return (x - m) / torch.sqrt(v + eps)
def _scatter_add(tgt, idx, src, axis=0):
    return tgt.clone().index_add_(axis, idx, src)
def _segment_sum(src, seg, n):
    out = torch.zeros((n,) + src.shape[1:], dtype=src.dtype)
    return out.index_add_(0, seg, src)
def _pad(x, pw):
    flat = tuple(v for pair in reversed(pw) for v in pair)
    return torch.nn.functional.pad(x, flat)

kernel_name = 'recurrent_scan__mha_block_cached__swiglu_ffn__decode'

def setup_inputs():

    _w = (lambda a: (lambda t: t.to(torch.bfloat16) if t.is_floating_point() else t)(torch.as_tensor(a)))
    def _A_setup():
        B, Sq, D = 1, 1, 512
        H, Sk, Dh = 32, 32768, 128
        return {
            "x": _w((lambda *s: torch.randn(*s, dtype=torch.bfloat16) * 0.05)(B, Sq, D)),
            "k_cache": _w((lambda *s: torch.randn(*s, dtype=torch.bfloat16) * 0.8)(B, H, Sk, Dh)),
            "v_cache": _w((lambda *s: torch.randn(*s, dtype=torch.bfloat16) * 0.8)(B, H, Sk, Dh)),
            "wq": _w((lambda *s: torch.randn(*s, dtype=torch.bfloat16) * 0.8)(D, H * Dh) * (D ** -0.5)),
            "wo": _w((lambda *s: torch.randn(*s, dtype=torch.bfloat16) * 0.8)(H * Dh, D) * ((H * Dh) ** -0.5)),
        }
    _A_in = _A_setup()

    def _B_setup():
        B, S, D, F = 1, 1, 512, 1376
        return {
            "x": _w((lambda *s: torch.randn(*s, dtype=torch.bfloat16) * 0.05)(B, S, D)),
            "w_gate": _w((lambda *s: torch.randn(*s, dtype=torch.bfloat16) * 0.2)(D, F)),
            "w_up": _w((lambda *s: torch.randn(*s, dtype=torch.bfloat16) * 0.2)(D, F)),
            "w_down": _w((lambda *s: torch.randn(*s, dtype=torch.bfloat16) * 0.2)(F, D)),
        }
    _B_in = _B_setup()

    return {
        "A_x": _A_in["x"],
        "A_k_cache": _A_in["k_cache"],
        "A_v_cache": _A_in["v_cache"],
        "A_wq": _A_in["wq"],
        "A_wo": _A_in["wo"],
        "B_x": _B_in["x"],
        "B_w_gate": _B_in["w_gate"],
        "B_w_up": _B_in["w_up"],
        "B_w_down": _B_in["w_down"],
    }

def reference(A_x, A_k_cache, A_v_cache, A_wq, A_wo, B_x, B_w_gate, B_w_up, B_w_down):
    def _A_ref(x, k_cache, v_cache, wq, wo):
        B, Sq, D = x.shape
        H, Dh = 32, 128
        q = (lambda x, *d: x.permute(*d))((x @ wq).reshape(B, Sq, H, Dh), 0, 2, 1, 3)
        scores = torch.einsum("bhqd,bhkd->bhqk", q, k_cache) * (Dh ** -0.5)
        p = _softmax(scores, axis=-1)
        o = torch.einsum("bhqk,bhkd->bhqd", p, v_cache)
        return (lambda x, *d: x.permute(*d))(o, 0, 2, 1, 3).reshape(B, Sq, H * Dh) @ wo

    def _B_ref(x, w_gate, w_up, w_down):
        g = _silu(x @ w_gate)
        u = x @ w_up
        return (g * u) @ w_down

    x = A_x
    xn = _layernorm(x, axis=-1)
    s = _A_ref(xn, A_k_cache, A_v_cache, A_wq, A_wo)
    g = _silu(_B_ref(xn, B_w_gate, B_w_up, B_w_down))
    return x + s * g
```

```python
import sys, math, struct

NAME = "recurrent_scan__mha_block_cached__swiglu_ffn__decode"

HDR = """; Kernarg layout for this problem (96 bytes, ptrs only, base s[0:1]):
"""

def f2u(x):
    return struct.unpack("<I", struct.pack("<f", x))[0]

WS_EPOCH = 0x0
WS_TICK  = 0x1000
WS_QP    = 0x10000
WS_P1    = 0x80000
WS_P2    = 0x100000
WS_FP    = 0x140000
WS_DBG   = 0x180000
WS_SIZE  = 0x200000

L_XN = 0
L_Q  = 2048
L_PART = 2304
L_ML = 4352
L_H  = 4480
L_O  = 4608
LDS_BYTES = 8192

DEAD = 0x10000000
OOBV = 0x7FFFFFF0

SCALE = 128 ** -0.5
LOG2E = 1.4426950408889634
CSC = SCALE * LOG2E

class Em:
    def __init__(self):
        self.L = []
        self.vm = []
    def __call__(self, s):
        self.L.append(s)
    def lab(self, s):
        self.L.append(s + ":")
    def c(self, s):
        self.L.append("; " + s)
    def vmem(self, s, tag):
        self.L.append(s); self.vm.append(tag)
    def wait_tag(self, tag):
        idx = max(i for i, t in enumerate(self.vm) if t == tag)
        n = len(self.vm) - 1 - idx
        assert n <= 63, n
        self.L.append(f"s_waitcnt vmcnt({n})")
        return n
    def text(self):
        out = []
        for x in self.L:
            if x.endswith(":") or x.startswith(";"):
                out.append(x)
            else:
                out.append("    " + x)
        return "\n".join(out) + "\n"

def allreduce(A, op, v, t, rors=(8, 4, 2, 1), x16=True, x32=True):
    for r in rors:
        A("s_nop 1")
        A(f"{op}_dpp v{v}, v{v}, v{v} row_ror:{r} row_mask:0xf bank_mask:0xf")
    if x16:
        A(f"v_mov_b32 v{t}, v{v}")
        A("s_nop 1")
        A(f"v_permlane16_swap_b32 v{v}, v{t}")
        A(f"{op} v{v}, v{v}, v{t}")
    if x32:
        A(f"v_mov_b32 v{t}, v{v}")
        A("s_nop 1")
        A(f"v_permlane32_swap_b32 v{v}, v{t}")
        A(f"{op} v{v}, v{v}, v{t}")

def rne_hi(A, dst, src):
    A(f"v_cvt_pk_bf16_f32 v{dst}, v{src}, v{src}")
    A(f"v_and_b32 v{dst}, 0xffff0000, v{dst}")

def silu(A, dst, src, t):
    A(f"v_mul_f32 v{t}, {hex(f2u(-LOG2E))}, v{src}")
    A(f"v_exp_f32 v{t}, v{t}")
    A("s_nop 0")
    A(f"v_add_f32 v{t}, 1.0, v{t}")
    A(f"v_rcp_f32 v{t}, v{t}")
    A("s_nop 0")
    A(f"v_mul_f32 v{dst}, v{src}, v{t}")

def gen(R=6, F=2, NS=60, HELPER=0, POLL_LIMIT=400000, dbg=False, nt_w="nt", stamp=False, prio=True):
    A = Em()
    NW = 5
    WSTREAM = 32
    NI = 2048
    assert F == 2
    A("s_cmp_ge_u32 s2, 256")
    A("s_cbranch_scc1 L_end")
    A("v_lshrrev_b32 v1, 6, v0")
    A("v_and_b32 v0, 63, v0")
    A("s_load_dwordx2 s[24:25], s[0:1], 88")
    A("v_readfirstlane_b32 s20, v1")
    A("s_lshr_b32 s21, s2, 3")
    A("s_and_b32 s22, s2, 7")
    if stamp:
        A("s_memrealtime s[90:91]")
    A(f"s_cmp_eq_u32 s20, {HELPER}")
    A("s_cbranch_scc1 L_helper")

    A("s_load_dwordx4 s[4:7], s[0:1], 8")
    if prio: A("s_setprio 1")
    if HELPER == 0:
        A("s_sub_u32 s23, s20, 1")
    else:
        A("s_mov_b32 s23, s20")
    vL = 0
    vKA, vVA, vCTR, vTICK = 2, 3, 4, 5
    vM = 6
    vO = 12
    vS = 16
    vm, vl = 10, 11
    vT, vU, vNM, vAL = 20, 21, 22, 23
    vP = 24
    vA = 28
    vQ = 44
    vRING = 64
    def kreg(k, u): return vRING + k * 32 + u * 4
    def vreg(k, u): return vRING + k * 32 + 16 + u * 4
    assert vRING + R * 32 <= 256
    sOFF = 40
    A("v_and_b32 v20, 15, v0")
    A("v_lshrrev_b32 v21, 4, v0")
    A("v_and_b32 v22, 3, v20")
    A("v_lshlrev_b32 v22, 2, v22")
    A("v_lshrrev_b32 v23, 2, v20")
    A("v_or_b32 v22, v22, v23")
    A("v_lshlrev_b32 v22, 8, v22")
    A(f"v_lshl_add_u32 v{vKA}, v21, 4, v22")
    A(f"v_lshlrev_b32 v{vVA}, 4, v0")
    A("v_and_b32 v22, 1, v20")
    A("v_mov_b32 v23, 0xffff")
    A("v_mov_b32 v24, 0xffff0000")
    A("v_cmp_eq_u32 vcc, 1, v22")
    A("v_lshrrev_b32 v25, 1, v20")
    A("s_nop 0")
    A("v_cndmask_b32 v23, v23, v24, vcc")
    for d in range(4):
        A(f"v_cmp_eq_u32 vcc, {d}, v25")
        A("s_nop 1")
        A(f"v_cndmask_b32 v{vM+d}, 0, v23, vcc")
    A("s_lshl_b32 s29, s21, 7")
    A(f"s_add_u32 s29, s29, {WS_TICK}")
    A("v_mov_b32 v22, s29")
    A(f"v_mov_b32 v{vCTR}, {hex(OOBV)}")
    A("v_cmp_eq_u32 vcc, 0, v0")
    A("s_nop 1")
    A(f"v_cndmask_b32 v{vCTR}, v{vCTR}, v22, vcc")
    A(f"v_mov_b32 v{vm}, 0xff800000")
    A(f"v_mov_b32 v{vl}, 0")
    for i in range(4): A(f"v_mov_b32 v{vO+i}, 0")
    A(f"s_mov_b32 s30, {hex(f2u(CSC))}")
    A(f"s_mov_b32 s31, {hex(f2u(-CSC))}")
    A("s_lshl_b32 s26, s21, 23")
    A("s_lshl_b32 s27, s22, 2")
    A("s_add_u32 s27, s27, s23")
    A("s_waitcnt lgkmcnt(0)")
    A("s_mov_b32 s8, s4"); A("s_mov_b32 s9, s5"); A(f"s_mov_b32 s10, {hex(DEAD)}"); A("s_mov_b32 s11, 0x20000")
    A("s_mov_b32 s12, s6"); A("s_mov_b32 s13, s7"); A(f"s_mov_b32 s14, {hex(DEAD)}"); A("s_mov_b32 s15, 0x20000")
    A("s_mov_b32 s16, s24"); A("s_mov_b32 s17, s25"); A("s_mov_b32 s18, 0"); A("s_mov_b32 s19, 0x20000")
    A("s_barrier")

    def static_off(n):
        k = n % R
        A(f"s_add_u32 s29, s27, {32*n}")
        A("s_lshl_b32 s29, s29, 12")
        A(f"s_add_u32 s{sOFF+k}, s29, s26")
    def issueK(n):
        k = n % R
        for u in range(4):
            r = kreg(k, u)
            A.vmem(f"buffer_load_dwordx4 v[{r}:{r+3}], v{vKA}, s[8:11], s{sOFF+k} offen offset:{u*64} nt", ("K", n))
    def issueV(n):
        k = n % R
        for u in range(4):
            r = vreg(k, u)
            A.vmem(f"buffer_load_dwordx4 v[{r}:{r+3}], v{vVA}, s[12:15], s{sOFF+k} offen offset:{u*1024} nt", ("V", n))
    def qk_mfma(n):
        k = n % R
        for u in range(4):
            r = kreg(k, u)
            c = "0" if u == 0 else f"v[{vS}:{vS+3}]"
            A(f"v_mfma_f32_16x16x32_bf16 v[{vS}:{vS+3}], v[{r}:{r+3}], v[{vQ+4*u}:{vQ+4*u+3}], {c}")
    def softmax(n, pad):
        if pad > 0: A(f"s_nop {pad-1}")
        A(f"v_max3_f32 v{vT}, v{vS}, v{vS+1}, v{vS+2}")
        A(f"v_max_f32 v{vT}, v{vT}, v{vS+3}")
        A(f"v_mov_b32 v{vU}, v{vT}")
        A("s_nop 1")
        A(f"v_permlane16_swap_b32 v{vT}, v{vU}")
        A(f"v_max_f32 v{vT}, v{vT}, v{vU}")
        A(f"v_mov_b32 v{vU}, v{vT}")
        A("s_nop 1")
        A(f"v_permlane32_swap_b32 v{vT}, v{vU}")
        A(f"v_max3_f32 v{vT}, v{vT}, v{vU}, v{vm}")
        A(f"v_mul_f32 v{vNM}, s31, v{vT}")
        A(f"v_fma_f32 v{vAL}, v{vm}, s30, v{vNM}")
        for i in range(4):
            A(f"v_fma_f32 v{vP+i}, v{vS+i}, s30, v{vNM}")
        A(f"v_exp_f32 v{vAL}, v{vAL}")
        for i in range(4):
            A(f"v_exp_f32 v{vP+i}, v{vP+i}")
        A(f"v_mov_b32 v{vm}, v{vT}")
        for i in range(4):
            A(f"v_mul_f32 v{vO+i}, v{vO+i}, v{vAL}")
        A(f"v_add_f32 v{vT}, v{vP}, v{vP+1}")
        A(f"v_add_f32 v{vU}, v{vP+2}, v{vP+3}")
        for i in range(4):
            A(f"v_cvt_pk_bf16_f32 v{vP+i}, v{vP+i}, v{vP+i}")
        A(f"v_add_f32 v{vT}, v{vT}, v{vU}")
        A(f"v_fma_f32 v{vl}, v{vl}, v{vAL}, v{vT}")
        for i in range(4):
            for d in range(4):
                A(f"v_and_b32 v{vA+4*i+d}, v{vP+i}, v{vM+d}")
    def pv_mfma(n):
        k = n % R
        for u in range(4):
            r = vreg(k, u)
            A(f"v_mfma_f32_16x16x32_bf16 v[{vO}:{vO+3}], v[{vA+4*u}:{vA+4*u+3}], v[{r}:{r+3}], v[{vO}:{vO+3}]")

    units = []
    def issue_unit(u):
        n = u // 2
        if u % 2 == 0:
            static_off(n); issueK(n)
        else:
            issueV(n)
    def land_unit(u):
        A.wait_tag(("K" if u % 2 == 0 else "V", u // 2))
    for u in range(F): issue_unit(u)
    for u in range(2 * R - F):
        land_unit(u); issue_unit(u + F)
    A("s_barrier")
    A("v_lshrrev_b32 v20, 4, v0")
    A("v_lshlrev_b32 v20, 4, v20")
    for s in range(4):
        A(f"ds_read_b128 v[{vQ+4*s}:{vQ+4*s+3}], v20 offset:{L_Q + s*64}")
    A("s_waitcnt lgkmcnt(0)")
    P = 0; I = 2 * R; Ld = 2 * R - F
    def proc_unit(u):
        n = u // 2
        if u % 2 == 0:
            qk_mfma(n); softmax(n, 8)
        else:
            A("s_nop 1")
            pv_mfma(n)
    state_ok = lambda: (P == Ld and P % 2 == 0 and I == P + F)
    steps = 0
    while not state_ok():
        steps += 1
        assert steps < 100
        while P <= I - 2 * R:
            proc_unit(P); P += 1
        if I - Ld < F or True:
            land_unit(Ld); Ld += 1
            issue_unit(I); I += 1
        k = 0
        while P < Ld and k < 2:
            proc_unit(P); P += 1; k += 1
        if P == Ld and P % 2 == 1:
            land_unit(Ld); Ld += 1
            issue_unit(I); I += 1
            proc_unit(P); P += 1
    n0 = P // 2
    assert I == 2 * n0 + 2
    A.c(f"catch-up done: loop starts at item {n0}, slot {n0 % R}")
    assert n0 + 2 <= NS
    A(f"s_add_u32 s27, s27, {32*(n0+1)}")
    A(f"s_mov_b32 s28, {n0+1}")
    A(f"v_mov_b32 v{vTICK}, 0")
    if dbg:
        A("s_mov_b32 s60, 0"); A("s_mov_b32 s61, 0")
    first = True
    A.lab("L_loop")
    for kk in range(R):
        n = n0 + kk
        k = n % R; k2 = (n + 1) % R
        A.c(f"--- item slot {k}")
        A(f"s_cmp_ge_u32 s{sOFF+k}, {hex(DEAD)}")
        A("s_cbranch_scc1 L_fin")
        A("s_waitcnt vmcnt(4)")
        qk_mfma(n)
        A(f"v_readfirstlane_b32 s29, v{vTICK}")
        A(f"s_add_u32 s29, s29, {32*NS}")
        A(f"s_cmp_lt_u32 s28, {NS}")
        A("s_cselect_b32 s29, s27, s29")
        A(f"s_cmp_lt_u32 s28, {NS+NI-32*NS+2}")
        A(f"s_cselect_b32 s29, s29, {NI}")
        if dbg:
            A(f"s_cmp_lt_u32 s29, {NI}")
            A("s_cselect_b32 s62, s29, 0")
            A("s_cselect_b32 s63, 1, 0")
            A("s_add_u32 s60, s60, s62")
            A("s_add_u32 s61, s61, s63")
        A("s_add_u32 s27, s27, 32")
        A("s_add_u32 s28, s28, 1")
        A("s_lshl_b32 s33, s29, 12")
        A("s_add_u32 s33, s33, s26")
        A(f"s_cmp_lt_u32 s29, {NI}")
        A(f"s_cselect_b32 s{sOFF+k2}, s33, {hex(DEAD)}")
        A(f"s_cmp_ge_u32 s28, {NS}")
        A(f"s_cselect_b32 s18, {hex(WS_SIZE)}, 0")
        A(f"v_mov_b32 v{vTICK}, 1")
        A(f"buffer_atomic_add v{vTICK}, v{vCTR}, s[16:19], 0 offen sc0 sc1")
        for u in range(4):
            r = kreg(k2, u)
            A(f"buffer_load_dwordx4 v[{r}:{r+3}], v{vKA}, s[8:11], s{sOFF+k2} offen offset:{u*64} nt")
        softmax(n, 0)
        A("s_waitcnt vmcnt(5)")
        for u in range(4):
            r = vreg(k2, u)
            A(f"buffer_load_dwordx4 v[{r}:{r+3}], v{vVA}, s[12:15], s{sOFF+k2} offen offset:{u*1024} nt")
        pv_mfma(n)
    A("s_branch L_loop")
    A.lab("L_fin")
    A("s_nop 7")
    A("v_lshrrev_b32 v20, 4, v0")
    A("v_and_b32 v21, 15, v0")
    A("s_lshl_b32 s29, s23, 5")
    A(f"s_add_u32 s29, s29, {L_ML}")
    A("v_lshlrev_b32 v22, 2, v20")
    A("v_add_u32 v22, s29, v22")
    A(f"ds_write_b32 v22, v{vl}")
    A("v_mov_b32 v22, s29")
    A(f"ds_write_b32 v22, v{vm} offset:16")
    A("s_lshl_b32 s29, s23, 9")
    A(f"s_add_u32 s29, s29, {L_PART}")
    A("v_lshlrev_b32 v22, 5, v21")
    A("v_lshl_add_u32 v22, v20, 4, v22")
    A("v_add_u32 v22, s29, v22")
    A("s_mov_b32 exec_hi, 0")
    A(f"ds_write_b128 v22, v[{vO}:{vO+3}]")
    A("s_mov_b32 exec_hi, -1")
    if stamp:
        A("s_memrealtime s[92:93]")
    A("s_waitcnt lgkmcnt(0)")
    A("s_barrier")
    A("s_waitcnt vmcnt(0)")
    if dbg:
        A("s_lshl_b32 s29, s2, 2")
        A("s_add_u32 s29, s29, s23")
        A("s_lshl_b32 s29, s29, 3")
        A(f"s_add_u32 s29, s29, {WS_DBG + 0x10000}")
        A("v_mov_b32 v8, s60"); A("v_mov_b32 v9, s61"); A("v_mov_b32 v12, 0")
        A(f"s_mov_b32 s18, {hex(WS_SIZE)}")
        A("s_mov_b64 exec, 1")
        A("buffer_store_dwordx2 v[8:9], v12, s[16:19], s29 offen")
        A("s_waitcnt vmcnt(0)")
    if stamp:
        stamp_out(A, 0)
    A("s_endpgm")

    A.lab("L_helper")
    A.vm = []
    A("s_load_dwordx2 s[4:5], s[0:1], 0")
    A("s_load_dwordx4 s[36:39], s[0:1], 24")
    A("s_load_dwordx4 s[44:47], s[0:1], 48")
    A("s_load_dwordx4 s[48:51], s[0:1], 64")
    if prio: A("s_setprio 3")
    hE = 2
    hT = 4
    hX = 8
    hF = 12
    hW = 64
    hM = 20
    hD = 28
    A("v_and_b32 v32, 15, v0")
    A("v_lshrrev_b32 v33, 4, v0")
    A("s_lshl_b32 s29, s22, 19")
    A("s_lshl_b32 s30, s21, 8")
    A("s_add_u32 s29, s29, s30")
    A("v_lshlrev_b32 v34, 17, v33")
    A("v_lshl_add_u32 v34, v32, 4, v34")
    A("v_add_u32 v34, s29, v34")
    A("v_lshlrev_b32 v35, 4, v0")
    A("v_mov_b32 v36, 0")
    A("s_waitcnt lgkmcnt(0)")
    A("s_mov_b32 s12, s24"); A("s_mov_b32 s13, s25"); A(f"s_mov_b32 s14, {hex(WS_SIZE)}"); A("s_mov_b32 s15, 0x20000")
    A("s_mov_b32 s8, s4"); A("s_mov_b32 s9, s5"); A("s_mov_b32 s10, 1024"); A("s_mov_b32 s11, 0x20000")
    A("s_mov_b32 s16, s36"); A("s_mov_b32 s17, s37"); A(f"s_mov_b32 s18, {512*8192}"); A("s_mov_b32 s19, 0x20000")
    A.vmem(f"buffer_load_dwordx4 v[{hX}:{hX+3}], v35, s[8:11], 0 offen", "x")
    A.vmem(f"buffer_load_dwordx2 v[{hE}:{hE+1}], v36, s[12:15], 0 offen sc1", "E")
    for i in range(16):
        A(f"s_mov_b32 s29, {i*8192}")
        A.vmem(f"buffer_load_dwordx4 v[{hW+4*i}:{hW+4*i+3}], v34, s[16:19], s29 offen {nt_w}", "wq")
    A("s_barrier")
    A("s_cmp_lg_u32 s22, 0")
    A("s_cbranch_scc1 L_nozero")
    A("s_lshl_b32 s29, s21, 7")
    A(f"s_add_u32 s29, s29, {WS_TICK}")
    A("s_mov_b64 exec, 1")
    A("buffer_store_dword v36, v36, s[12:15], s29 offen sc1")
    A("s_mov_b64 exec, -1")
    A.lab("L_nozero")
    A("v_and_b32 v37, 1, v32")
    A("v_mov_b32 v38, 0xffff")
    A("v_mov_b32 v39, 0xffff0000")
    A("v_cmp_eq_u32 vcc, 1, v37")
    A("v_lshrrev_b32 v40, 1, v32")
    A("v_and_b32 v41, 3, v40")
    A("v_cndmask_b32 v38, v38, v39, vcc")
    for d in range(4):
        A(f"v_cmp_eq_u32 vcc, {d}, v40")
        A("s_nop 1")
        A(f"v_cndmask_b32 v{hM+d}, 0, v38, vcc")
        A(f"v_cmp_eq_u32 vcc, {d}, v41")
        A("s_nop 1")
        A(f"v_cndmask_b32 v{hM+4+d}, 0, v38, vcc")
    A("s_waitcnt vmcnt(16)")
    for q in range(4):
        A(f"v_lshlrev_b32 v{hF+2*q}, 16, v{hX+q}")
        A(f"v_and_b32 v{hF+2*q+1}, 0xffff0000, v{hX+q}")
    A(f"v_add_co_u32 v{hT}, vcc, 1, v{hE}")
    A("s_nop 1")
    A(f"v_addc_co_u32 v{hT+1}, vcc, 0, v{hE+1}, vcc")
    A(f"v_add_f32 v42, v{hF}, v{hF+1}")
    for q in range(2, 8):
        A(f"v_add_f32 v42, v42, v{hF+q}")
    allreduce(A, "v_add_f32", 42, 43)
    A(f"v_mul_f32 v42, {hex(f2u(1/512))}, v42")
    A(f"v_sub_f32 v44, v{hF}, v42")
    A("v_mul_f32 v45, v44, v44")
    for q in range(1, 8):
        A(f"v_sub_f32 v44, v{hF+q}, v42")
        A("v_fmac_f32 v45, v44, v44")
    allreduce(A, "v_add_f32", 45, 43)
    A(f"v_mul_f32 v45, {hex(f2u(1/512))}, v45")
    rne_hi(A, 42, 42)
    rne_hi(A, 45, 45)
    A(f"v_add_f32 v45, {hex(f2u(1e-5))}, v45")
    rne_hi(A, 45, 45)
    A("v_sqrt_f32 v45, v45")
    A("s_nop 0")
    rne_hi(A, 45, 45)
    A("v_rcp_f32 v46, v45")
    for q in range(8):
        A(f"v_sub_f32 v{hF+q}, v{hF+q}, v42")
        rne_hi(A, hF + q, hF + q)
        A(f"v_mul_f32 v44, v{hF+q}, v46")
        A(f"v_fma_f32 v47, -v44, v45, v{hF+q}")
        A(f"v_fma_f32 v44, v47, v46, v44")
        rne_hi(A, hF + q, 44)
    A("v_lshlrev_b32 v44, 5, v0")
    A(f"ds_write_b128 v44, v[{hF}:{hF+3}] offset:{L_XN}")
    A(f"ds_write_b128 v44, v[{hF+4}:{hF+7}] offset:{L_XN+16}")
    A("s_lshl_b32 s29, s22, 8")
    A("v_lshlrev_b32 v44, 6, v33")
    A("v_add_u32 v44, s29, v44")
    A("s_waitcnt lgkmcnt(0)")
    hXA = 128
    for q in range(4):
        A(f"ds_read_b128 v[{hXA+4*q}:{hXA+4*q+3}], v44 offset:{L_XN+16*q}")
    A("s_waitcnt lgkmcnt(0)")
    for i in range(16):
        A(f"v_cvt_pk_bf16_f32 v{hXA+i}, v{hXA+i}, v{hXA+i}")
    A("s_waitcnt vmcnt(0)")
    hA = 144
    for i in range(16):
        a = hA + 4 * (i & 1)
        for d in range(4):
            A(f"v_and_b32 v{a+d}, v{hXA+i}, v{hM+d}")
        A("s_nop 1")
        c = "0" if i == 0 else f"v[{hD}:{hD+3}]"
        A(f"v_mfma_f32_16x16x32_bf16 v[{hD}:{hD+3}], v[{a}:{a+3}], v[{hW+4*i}:{hW+4*i+3}], {c}")
    A("s_lshl_b32 s29, s2, 10")
    A(f"s_add_u32 s29, s29, {WS_QP}")
    A("v_lshlrev_b32 v44, 6, v32")
    A("v_lshl_add_u32 v44, v33, 5, v44")
    A("s_nop 4")
    def publish2(dreg, vaddr, soff):
        A(f"v_mov_b32 v48, v{dreg}"); A(f"v_mov_b32 v49, v{dreg+1}"); A(f"v_mov_b32 v50, v{hT}"); A(f"v_mov_b32 v51, v{hT+1}")
        A(f"v_mov_b32 v52, v{dreg+2}"); A(f"v_mov_b32 v53, v{dreg+3}"); A(f"v_mov_b32 v54, v{hT}"); A(f"v_mov_b32 v55, v{hT+1}")
        A(f"buffer_store_dwordx4 v[48:51], v{vaddr}, s[12:15], {soff} offen sc1")
        A(f"buffer_store_dwordx4 v[52:55], v{vaddr}, s[12:15], {soff} offen offset:16 sc1")
    A("s_mov_b32 exec_hi, 0")
    publish2(hD, 44, "s29")
    A("s_mov_b32 exec_hi, -1")
    def poll(label, loads, nregs_tagpairs, extra_ok=None, sleep=0):
        A(f"s_mov_b32 s34, {POLL_LIMIT}")
        A.lab(label)
        loads()
        A("s_waitcnt vmcnt(0)")
        A("s_mov_b64 s[30:31], -1")
        for idx, tp in enumerate(nregs_tagpairs):
            A(f"v_cmp_eq_u64 vcc, v[{tp}:{tp+1}], v[{hT}:{hT+1}]")
            if extra_ok and idx in extra_ok:
                A(f"s_or_b64 vcc, vcc, {extra_ok[idx]}")
            A("s_and_b64 s[30:31], s[30:31], vcc")
        A("s_cmp_eq_u64 s[30:31], -1")
        A(f"s_cbranch_scc1 {label}_ok")
        if sleep: A(f"s_sleep {sleep}")
        A("s_sub_u32 s34, s34, 1")
        A("s_cmp_lg_u32 s34, 0")
        A(f"s_cbranch_scc1 {label}")
        A.lab(label + "_ok")
    hG = 64
    A("s_lshl_b32 s29, s21, 13")
    A(f"s_add_u32 s29, s29, {WS_QP}")
    def qloads():
        for jj in range(8):
            A(f"s_add_u32 s33, s29, {jj*1024}")
            A(f"buffer_load_dwordx4 v[{hG+4*jj}:{hG+4*jj+3}], v35, s[12:15], s33 offen sc1")
    poll("L_pq", qloads, [hG + 4 * jj + 2 for jj in range(8)])
    A(f"v_add_f32 v44, v{hG}, v{hG+4}")
    A(f"v_add_f32 v45, v{hG+1}, v{hG+5}")
    for jj in range(2, 8):
        A(f"v_add_f32 v44, v44, v{hG+4*jj}")
        A(f"v_add_f32 v45, v45, v{hG+4*jj+1}")
    A("v_cvt_pk_bf16_f32 v44, v44, v45")
    A("v_lshlrev_b32 v45, 2, v0")
    A(f"ds_write_b32 v45, v44 offset:{L_Q}")
    A("s_waitcnt lgkmcnt(0)")
    A("s_barrier")
    if prio: A("s_setprio 0")

    for w in range(256):
        assert (w * 171) >> 10 == w // 6
    A("s_mul_i32 s29, s2, 171")
    A("s_lshr_b32 s29, s29, 10")
    A("s_mul_i32 s30, s29, 6")
    A("s_cmp_lg_u32 s30, s2")
    A("s_cbranch_scc1 L_noffn")
    A("s_mov_b32 s35, s29")
    A("s_mov_b32 s8, s44"); A("s_mov_b32 s9, s45"); A(f"s_mov_b32 s10, {512*2752}"); A("s_mov_b32 s11, 0x20000")
    A("s_mov_b32 s16, s46"); A("s_mov_b32 s17, s47"); A(f"s_mov_b32 s18, {512*2752}"); A("s_mov_b32 s19, 0x20000")
    A("v_lshrrev_b32 v44, 2, v0")
    A("v_and_b32 v45, 3, v0")
    A(f"s_mov_b32 s30, {32*2752}")
    A("v_mul_lo_u32 v46, v44, s30")
    A("v_lshl_add_u32 v46, v45, 4, v46")
    A("s_lshl_b32 s30, s35, 6")
    A("v_add_u32 v46, s30, v46")
    A("v_lshlrev_b32 v47, 7, v44")
    hAG = 12
    hAU = 56
    for q in range(8):
        A(f"v_mov_b32 v{hAG+q}, 0"); A(f"v_mov_b32 v{hAU+q}, 0")
    A("s_mov_b32 s31, 0")
    A("s_mov_b32 s32, 4")
    A.lab("L_f1")
    for i in range(8):
        A(f"s_add_u32 s33, s31, {i*2752}")
        A(f"buffer_load_dwordx4 v[{64+4*i}:{64+4*i+3}], v46, s[8:11], s33 offen {nt_w}")
        A(f"buffer_load_dwordx4 v[{96+4*i}:{96+4*i+3}], v46, s[16:19], s33 offen {nt_w}")
    A(f"ds_read_b128 v[128:131], v47 offset:{L_XN}")
    A(f"ds_read_b128 v[132:135], v47 offset:{L_XN+16}")
    A("v_add_u32 v47, 32, v47")
    A(f"s_add_u32 s31, s31, {8*2752}")
    A("s_waitcnt vmcnt(0) lgkmcnt(0)")
    for i in range(8):
        for (base, acc) in ((64, hAG), (96, hAU)):
            for q in range(4):
                r = base + 4 * i + q
                A(f"v_lshlrev_b32 v44, 16, v{r}")
                A(f"v_and_b32 v45, 0xffff0000, v{r}")
                A(f"v_fmac_f32 v{acc+2*q}, v44, v{128+i}")
                A(f"v_fmac_f32 v{acc+2*q+1}, v45, v{128+i}")
    A("s_sub_u32 s32, s32, 1")
    A("s_cmp_lg_u32 s32, 0")
    A("s_cbranch_scc1 L_f1")
    for q in range(8):
        allreduce(A, "v_add_f32", hAG + q, 44, rors=(4, 8))
        allreduce(A, "v_add_f32", hAU + q, 44, rors=(4, 8))
    for q in range(8):
        rne_hi(A, hAG + q, hAG + q)
        silu(A, hAG + q, hAG + q, 44)
        rne_hi(A, hAG + q, hAG + q)
        rne_hi(A, hAU + q, hAU + q)
        A(f"v_mul_f32 v{hAG+q}, v{hAG+q}, v{hAU+q}")
        rne_hi(A, hAG + q, hAG + q)
    A("v_and_b32 v45, 3, v0")
    A("v_lshlrev_b32 v45, 5, v45")
    A("s_mov_b64 exec, 15")
    A(f"ds_write_b128 v45, v[{hAG}:{hAG+3}] offset:{L_H}")
    A(f"ds_write_b128 v45, v[{hAG+4}:{hAG+7}] offset:{L_H+16}")
    A("s_mov_b64 exec, -1")
    A("s_mov_b32 s8, s48"); A("s_mov_b32 s9, s49"); A(f"s_mov_b32 s10, {1376*1024}"); A("s_mov_b32 s11, 0x20000")
    A("s_lshl_b32 s31, s35, 15")
    A(f"v_mov_b32 v47, {L_H}")
    for q in range(8): A(f"v_mov_b32 v{hAU+q}, 0")
    A("s_mov_b32 s32, 4")
    A("s_waitcnt lgkmcnt(0)")
    A.lab("L_f2")
    for i in range(8):
        A(f"s_add_u32 s33, s31, {i*1024}")
        A(f"buffer_load_dwordx4 v[{64+4*i}:{64+4*i+3}], v35, s[8:11], s33 offen {nt_w}")
    A("ds_read_b128 v[128:131], v47")
    A("ds_read_b128 v[132:135], v47 offset:16")
    A("v_add_u32 v47, 32, v47")
    A(f"s_add_u32 s31, s31, {8*1024}")
    A("s_waitcnt vmcnt(0) lgkmcnt(0)")
    for i in range(8):
        for q in range(4):
            r = 64 + 4 * i + q
            A(f"v_lshlrev_b32 v44, 16, v{r}")
            A(f"v_and_b32 v45, 0xffff0000, v{r}")
            A(f"v_fmac_f32 v{hAU+2*q}, v44, v{128+i}")
            A(f"v_fmac_f32 v{hAU+2*q+1}, v45, v{128+i}")
    A("s_sub_u32 s32, s32, 1")
    A("s_cmp_lg_u32 s32, 0")
    A("s_cbranch_scc1 L_f2")
    A("s_lshl_b32 s29, s35, 12")
    A(f"s_add_u32 s29, s29, {WS_FP}")
    A("v_lshlrev_b32 v44, 6, v0")
    publish2(hAU, 44, "s29")
    A("s_add_u32 s29, s29, 32")
    A("s_nop 1")
    publish2(hAU + 4, 44, "s29")
    A.lab("L_noffn")

    A("s_mov_b32 s16, s38"); A("s_mov_b32 s17, s39"); A(f"s_mov_b32 s18, {4096*1024}"); A("s_mov_b32 s19, 0x20000")
    hWO = 160
    A("v_lshrrev_b32 v44, 3, v0")
    A("v_lshlrev_b32 v44, 14, v44")
    A("v_and_b32 v45, 7, v0")
    A("v_lshl_add_u32 v44, v45, 4, v44")
    A("s_lshl_b32 s29, s21, 17")
    A("s_lshl_b32 s30, s22, 7")
    A("s_add_u32 s29, s29, s30")
    for i in range(16):
        A(f"s_add_u32 s33, s29, {i*1024}")
        A(f"buffer_load_dwordx4 v[{hWO+4*i}:{hWO+4*i+3}], v44, s[16:19], s33 offen {nt_w}")

    A("s_and_b32 s29, s21, 7")
    A("s_cmp_lg_u32 s29, s22")
    A("s_cbranch_scc1 L_nocons1")
    hGG = 56
    A("v_lshrrev_b32 v45, 3, v0")
    A("v_lshlrev_b32 v45, 12, v45")
    A("v_and_b32 v46, 7, v0")
    A("v_lshl_add_u32 v45, v46, 4, v45")
    A("s_lshl_b32 s29, s21, 7")
    A(f"s_add_u32 s29, s29, {WS_FP}")
    A(f"v_mov_b32 v47, {hex(OOBV)}")
    A("v_cmp_gt_u32 vcc, 24, v0")
    A("s_nop 1")
    A("v_cndmask_b32 v47, v47, v45, vcc")
    A("s_mov_b32 s52, 0xff000000"); A("s_mov_b32 s53, -1")
    def floads():
        for k in range(6):
            A(f"s_add_u32 s33, s29, {k*8*4096}")
            va = 47 if k == 5 else 45
            A(f"buffer_load_dwordx4 v[{64+4*k}:{64+4*k+3}], v{va}, s[12:15], s33 offen sc1")
    poll("L_pf", floads, [64 + 4 * k + 2 for k in range(6)], extra_ok={5: "s[52:53]"}, sleep=8)
    A("v_add_f32 v56, v64, v68"); A("v_add_f32 v57, v65, v69")
    for k in range(2, 6):
        A(f"v_add_f32 v56, v56, v{64+4*k}"); A(f"v_add_f32 v57, v57, v{64+4*k+1}")
    allreduce(A, "v_add_f32", 56, 44, rors=(8,))
    allreduce(A, "v_add_f32", 57, 44, rors=(8,))
    for r in (56, 57):
        rne_hi(A, r, r)
        silu(A, r, r, 44)
        rne_hi(A, r, r)
    A("s_mov_b32 s8, s4"); A("s_mov_b32 s9, s5"); A("s_mov_b32 s10, 1024"); A("s_mov_b32 s11, 0x20000")
    A("s_lshl_b32 s29, s21, 5")
    A("v_lshlrev_b32 v46, 2, v46")
    A("buffer_load_dword v58, v46, s[8:11], s29 offen")
    A("s_waitcnt vmcnt(0)")
    A("v_and_b32 v59, 0xffff0000, v58")
    A("v_lshlrev_b32 v58, 16, v58")
    A.lab("L_nocons1")

    A("s_waitcnt vmcnt(0)")
    A("s_barrier")
    if prio: A("s_setprio 3")
    if stamp:
        A("s_memrealtime s[92:93]")
    A("v_mov_b32 v44, 0")
    for w in range(4):
        A(f"ds_read_b128 v[{64+4*w}:{64+4*w+3}], v44 offset:{L_ML+32*w}")
        A(f"ds_read_b32 v{80+w}, v44 offset:{L_ML+32*w+16}")
    A("v_lshlrev_b32 v45, 3, v0")
    for w in range(4):
        A(f"ds_read_b64 v[{84+2*w}:{84+2*w+1}], v45 offset:{L_PART+512*w}")
    A(f"s_mov_b32 s30, {hex(f2u(CSC))}")
    A(f"s_mov_b32 s31, {hex(f2u(-CSC))}")
    A("s_waitcnt lgkmcnt(0)")
    A("v_max3_f32 v92, v80, v81, v82")
    A("v_max_f32 v92, v92, v83")
    A("v_mul_f32 v93, s31, v92")
    for w in range(4):
        A(f"v_fma_f32 v{80+w}, v{80+w}, s30, v93")
    for w in range(4):
        A(f"v_exp_f32 v{80+w}, v{80+w}")
    for w in range(4):
        A(f"v_add_f32 v{64+4*w}, v{64+4*w}, v{64+4*w+1}")
        A(f"v_add_f32 v{64+4*w+2}, v{64+4*w+2}, v{64+4*w+3}")
        A(f"v_add_f32 v{64+4*w}, v{64+4*w}, v{64+4*w+2}")
    A("v_mul_f32 v94, v64, v80")
    A("v_mul_f32 v48, v84, v80")
    A("v_mul_f32 v49, v85, v80")
    for w in range(1, 4):
        A(f"v_fmac_f32 v94, v{64+4*w}, v{80+w}")
        A(f"v_fmac_f32 v48, v{84+2*w}, v{80+w}")
        A(f"v_fmac_f32 v49, v{85+2*w}, v{80+w}")
    A(f"v_mov_b32 v50, v{hT}"); A(f"v_mov_b32 v51, v{hT+1}")
    A("v_mov_b32 v52, v92"); A("v_mov_b32 v53, v94"); A(f"v_mov_b32 v54, v{hT}"); A(f"v_mov_b32 v55, v{hT+1}")
    A("s_lshl_b32 s29, s2, 11")
    A(f"s_add_u32 s29, s29, {WS_P1}")
    A("buffer_store_dwordx4 v[48:51], v35, s[12:15], s29 offen sc1")
    A("s_mov_b64 exec, 1")
    A("buffer_store_dwordx4 v[52:55], v36, s[12:15], s29 offen offset:1024 sc1")
    A("s_mov_b64 exec, -1")
    A("s_lshl_b32 s29, s21, 14")
    A(f"s_add_u32 s29, s29, {WS_P1}")
    A("v_and_b32 v45, 7, v0")
    A("v_lshlrev_b32 v45, 11, v45")
    def ploads():
        A(f"buffer_load_dwordx4 v[96:99], v45, s[12:15], s29 offen offset:1024 sc1")
        for jj in range(8):
            A(f"s_add_u32 s33, s29, {jj*2048}")
            A(f"buffer_load_dwordx4 v[{64+4*jj}:{64+4*jj+3}], v35, s[12:15], s33 offen sc1")
    poll("L_pp", ploads, [98] + [64 + 4 * jj + 2 for jj in range(8)])
    A(f"s_mov_b32 s30, {hex(f2u(CSC))}")
    A(f"s_mov_b32 s31, {hex(f2u(-CSC))}")
    A("v_mov_b32 v100, v96")
    allreduce(A, "v_max_f32", 100, 44, rors=(4, 2, 1), x16=False, x32=False)
    A("v_mul_f32 v101, s31, v100")
    A("v_fma_f32 v101, v96, s30, v101")
    A("v_exp_f32 v101, v101")
    A("s_nop 0")
    A("v_mul_f32 v102, v101, v97")
    allreduce(A, "v_add_f32", 102, 44, rors=(4, 2, 1), x16=False, x32=False)
    A("v_rcp_f32 v103, v102")
    A("s_nop 0")
    A("v_fma_f32 v104, -v102, v103, 1.0")
    A("v_fma_f32 v103, v104, v103, v103")
    A("v_mul_f32 v101, v101, v103")
    A("s_nop 0")
    for jj in range(8):
        A(f"v_readlane_b32 s{56+jj}, v101, {jj}")
    A("s_nop 1")
    A("v_mul_f32 v48, s56, v64"); A("v_mul_f32 v49, s56, v65")
    for jj in range(1, 8):
        A(f"v_fmac_f32 v48, s{56+jj}, v{64+4*jj}"); A(f"v_fmac_f32 v49, s{56+jj}, v{64+4*jj+1}")
    A("v_lshlrev_b32 v45, 3, v0")
    A(f"ds_write_b64 v45, v[48:49] offset:{L_O}")
    A("v_lshrrev_b32 v45, 3, v0")
    A("v_lshlrev_b32 v45, 6, v45")
    A("s_waitcnt lgkmcnt(0)")
    for q in range(4):
        A(f"ds_read_b128 v[{hXA+4*q}:{hXA+4*q+3}], v45 offset:{L_O+16*q}")
    A("s_waitcnt lgkmcnt(0)")
    for i in range(16):
        A(f"v_cvt_pk_bf16_f32 v{hXA+i}, v{hXA+i}, v{hXA+i}")
    for i in range(16):
        a = hA + 4 * (i & 1)
        for d in range(4):
            A(f"v_and_b32 v{a+d}, v{hXA+i}, v{hM+4+d}")
        A("s_nop 1")
        c = "0" if i == 0 else f"v[{hD}:{hD+3}]"
        A(f"v_mfma_f32_16x16x32_bf16 v[{hD}:{hD+3}], v[{a}:{a+3}], v[{hWO+4*i}:{hWO+4*i+3}], {c}")
    A("s_nop 7")
    for i in range(4):
        A(f"v_mov_b32 v{64+i}, v{hD+i}")
    A("s_nop 1")
    for i in range(4):
        A(f"v_permlane32_swap_b32 v{hD+i}, v{64+i}")
    A("s_nop 1")
    for i in range(4):
        A(f"v_add_f32_dpp v{hD+i}, v{64+i}, v{hD+i} row_ror:8 row_mask:0xf bank_mask:0xf")
    A("s_lshl_b32 s29, s21, 12")
    A("s_lshl_b32 s30, s22, 9")
    A("s_add_u32 s29, s29, s30")
    A(f"s_add_u32 s29, s29, {WS_P2}")
    A("v_lshlrev_b32 v44, 6, v32")
    A("v_lshl_add_u32 v44, v33, 5, v44")
    A("s_mov_b32 exec_lo, 0x00ff00ff")
    A("s_mov_b32 exec_hi, 0")
    publish2(hD, 44, "s29")
    A("s_mov_b64 exec, -1")
    if stamp:
        A("s_memrealtime s[94:95]")
    A("s_and_b32 s29, s21, 7")
    A("s_cmp_lg_u32 s29, s22")
    A("s_cbranch_scc1 L_hend")
    A("v_lshrrev_b32 v45, 3, v0")
    A("v_lshlrev_b32 v45, 12, v45")
    A("v_and_b32 v46, 7, v0")
    A("v_lshl_add_u32 v45, v46, 4, v45")
    A("s_lshl_b32 s29, s21, 7")
    A(f"s_add_u32 s29, s29, {WS_P2}")
    def sloads():
        for k in range(4):
            A(f"s_add_u32 s33, s29, {k*8*4096}")
            A(f"buffer_load_dwordx4 v[{64+4*k}:{64+4*k+3}], v45, s[12:15], s33 offen sc1")
    poll("L_ps", sloads, [64 + 4 * k + 2 for k in range(4)])
    A("v_add_f32 v48, v64, v68"); A("v_add_f32 v49, v65, v69")
    for k in range(2, 4):
        A(f"v_add_f32 v48, v48, v{64+4*k}"); A(f"v_add_f32 v49, v49, v{64+4*k+1}")
    allreduce(A, "v_add_f32", 48, 44, rors=(8,))
    allreduce(A, "v_add_f32", 49, 44, rors=(8,))
    for (r, g, x) in ((48, 56, 58), (49, 57, 59)):
        rne_hi(A, r, r)
        A(f"v_mul_f32 v{r}, v{r}, v{g}")
        rne_hi(A, r, r)
        A(f"v_add_f32 v{r}, v{r}, v{x}")
    A("v_cvt_pk_bf16_f32 v48, v48, v49")
    A("s_mov_b32 s8, s50"); A("s_mov_b32 s9, s51"); A("s_mov_b32 s10, 1024"); A("s_mov_b32 s11, 0x20000")
    A("s_lshl_b32 s29, s21, 5")
    A("v_lshlrev_b32 v46, 2, v46")
    A("s_mov_b64 exec, 0xff")
    A("buffer_store_dword v48, v46, s[8:11], s29 offen")
    A("s_cmp_lg_u32 s21, 0")
    A("s_cbranch_scc1 L_hend")
    A("s_mov_b64 exec, 1")
    A(f"buffer_store_dwordx2 v[{hT}:{hT+1}], v36, s[12:15], 0 offen sc1")
    A.lab("L_hend")
    A("s_mov_b64 exec, -1")
    A("s_waitcnt vmcnt(0)")
    if stamp:
        stamp_out(A, 1)
    A.lab("L_end")
    A("s_endpgm")

    head = HDR + f"; @launch grid=(256,1,1) block=({NW*64},1,1) lds={LDS_BYTES}\n" + f""".amdgcn_target "amdgcn-amd-amdhsa--gfx950"
.text
.globl {NAME}_kernel
.p2align 8
.type {NAME}_kernel,@function
{NAME}_kernel:
"""
    foot = f""".section .rodata,"a"
.p2align 6
.amdhsa_kernel {NAME}_kernel
  .amdhsa_next_free_vgpr 256
  .amdhsa_next_free_sgpr 102
  .amdhsa_accum_offset 256
  .amdhsa_group_segment_fixed_size 0
  .amdhsa_kernarg_size 96
  .amdhsa_user_sgpr_count 2
  .amdhsa_user_sgpr_kernarg_segment_ptr 1
  .amdhsa_system_sgpr_workgroup_id_x 1
.end_amdhsa_kernel
"""
    return head + A.text() + foot

def stamp_out(A, helper):
    A("s_memrealtime s[96:97]")
    A("s_waitcnt lgkmcnt(0)")
    A("s_mul_i32 s29, s2, 5")
    A("s_add_u32 s29, s29, s20")
    A("s_lshl_b32 s29, s29, 4")
    A(f"s_add_u32 s29, s29, {WS_DBG}")
    A("v_mov_b32 v8, s90"); A("v_mov_b32 v9, s92"); A("v_mov_b32 v10, s94"); A("v_mov_b32 v11, s96")
    A("v_mov_b32 v12, s29")
    A("s_mov_b64 exec, 1")
    A("global_store_dwordx4 v12, v[8:11], s[24:25]")
    A("s_waitcnt vmcnt(0)")

if __name__ == "__main__":
    kw = eval("dict(" + (sys.argv[2] if len(sys.argv) > 2 else "") + ")")
    open(sys.argv[1], "w").write(gen(**kw))
```

```python
import sys, math, struct

NAME = "recurrent_scan__mha_block_cached__swiglu_ffn__decode"

HDR = """; Kernarg layout for this problem (96 bytes, ptrs only, base s[0:1]):
"""

def f2u(x):
    return struct.unpack("<I", struct.pack("<f", x))[0]

WS_EPOCH = 0x0
WS_TICK  = 0x1000
WS_QP    = 0x10000
WS_P1    = 0x80000
WS_P2    = 0x100000
WS_FP    = 0x140000
WS_DBG   = 0x180000
WS_SIZE  = 0x200000

L_XN = 0
L_Q  = 2048
L_PART = 2304
L_ML = 4352
L_H  = 4480
L_O  = 4608
L_TK = 5120
L_PROG = 5888
L_FT = 6144
LDS_BYTES = 8192

DEAD = 0x10000000
OOBV = 0x7FFFFFF0

SCALE = 128 ** -0.5
LOG2E = 1.4426950408889634
CSC = SCALE * LOG2E

class Em:
    def __init__(self):
        self.L = []
        self.vm = []
    def __call__(self, s):
        self.L.append(s)
    def lab(self, s):
        self.L.append(s + ":")
    def c(self, s):
        self.L.append("; " + s)
    def vmem(self, s, tag):
        self.L.append(s); self.vm.append(tag)
    def wait_tag(self, tag):
        idx = max(i for i, t in enumerate(self.vm) if t == tag)
        n = len(self.vm) - 1 - idx
        assert n <= 63, n
        self.L.append(f"s_waitcnt vmcnt({n})")
        return n
    def text(self):
        out = []
        for x in self.L:
            if x.endswith(":") or x.startswith(";"):
                out.append(x)
            else:
                out.append("    " + x)
        return "\n".join(out) + "\n"

def allreduce(A, op, v, t, rors=(8, 4, 2, 1), x16=True, x32=True):
    for r in rors:
        A("s_nop 1")
        A(f"{op}_dpp v{v}, v{v}, v{v} row_ror:{r} row_mask:0xf bank_mask:0xf")
    if x16:
        A(f"v_mov_b32 v{t}, v{v}")
        A("s_nop 1")
        A(f"v_permlane16_swap_b32 v{v}, v{t}")
        A(f"{op} v{v}, v{v}, v{t}")
    if x32:
        A(f"v_mov_b32 v{t}, v{v}")
        A("s_nop 1")
        A(f"v_permlane32_swap_b32 v{v}, v{t}")
        A(f"{op} v{v}, v{v}, v{t}")

def rne_hi(A, dst, src):
    A(f"v_cvt_pk_bf16_f32 v{dst}, v{src}, v{src}")
    A(f"v_and_b32 v{dst}, 0xffff0000, v{dst}")

def silu(A, dst, src, t):
    A(f"v_mul_f32 v{t}, {hex(f2u(-LOG2E))}, v{src}")
    A(f"v_exp_f32 v{t}, v{t}")
    A("s_nop 0")
    A(f"v_add_f32 v{t}, 1.0, v{t}")
    A(f"v_rcp_f32 v{t}, v{t}")
    A("s_nop 0")
    A(f"v_mul_f32 v{dst}, v{src}, v{t}")

def gen(R=6, F=2, NS=60, HELPER=0, POLL_LIMIT=400000, dbg=False, nt_w="nt", stamp=False, prio=True,
        ffn=1, ffn_nt="nt", ffn_comp=True, ffn_s1=True, ffn_s2=True, gsleep=8, gexp=False,
        LEAD=2, wq_on=True, wo_on=True, psleep=2, cheapq=True):
    A = Em()
    NW = 5
    WSTREAM = 32
    NI = 2048
    assert F == 2
    A("s_cmp_ge_u32 s2, 256")
    A("s_cbranch_scc1 L_end")
    A("v_lshrrev_b32 v1, 6, v0")
    A("v_and_b32 v0, 63, v0")
    A("s_load_dwordx2 s[24:25], s[0:1], 88")
    A("v_readfirstlane_b32 s20, v1")
    A("s_lshr_b32 s21, s2, 3")
    A("s_and_b32 s22, s2, 7")
    def ST(i):
        if stamp: A(f"s_memrealtime s[{70+2*i}:{71+2*i}]")
    if stamp:
        for i in range(8): A(f"s_mov_b32 s{70+2*i}, 0")
    ST(0)
    A(f"s_cmp_eq_u32 s20, {HELPER}")
    A("s_cbranch_scc1 L_helper")

    A("s_load_dwordx4 s[4:7], s[0:1], 8")
    if prio: A("s_setprio 1")
    if HELPER == 0:
        A("s_sub_u32 s23, s20, 1")
    else:
        A("s_mov_b32 s23, s20")
    vL = 0
    vKA, vVA, vCTR, vTICK = 2, 3, 4, 5
    vM = 6
    vO = 12
    vS = 16
    vm, vl = 10, 11
    vT, vU, vNM, vAL = 20, 21, 22, 23
    vP = 24
    vA = 28
    vQ = 44
    vRING = 64
    def kreg(k, u): return vRING + k * 32 + u * 4
    def vreg(k, u): return vRING + k * 32 + 16 + u * 4
    assert vRING + R * 32 <= 256
    sOFF = 40
    A("v_and_b32 v20, 15, v0")
    A("v_lshrrev_b32 v21, 4, v0")
    A("v_and_b32 v22, 3, v20")
    A("v_lshlrev_b32 v22, 2, v22")
    A("v_lshrrev_b32 v23, 2, v20")
    A("v_or_b32 v22, v22, v23")
    A("v_lshlrev_b32 v22, 8, v22")
    A(f"v_lshl_add_u32 v{vKA}, v21, 4, v22")
    A(f"v_lshlrev_b32 v{vVA}, 4, v0")
    A("v_and_b32 v22, 1, v20")
    A("v_mov_b32 v23, 0xffff")
    A("v_mov_b32 v24, 0xffff0000")
    A("v_cmp_eq_u32 vcc, 1, v22")
    A("v_lshrrev_b32 v25, 1, v20")
    A("s_nop 0")
    A("v_cndmask_b32 v23, v23, v24, vcc")
    for d in range(4):
        A(f"v_cmp_eq_u32 vcc, {d}, v25")
        A("s_nop 1")
        A(f"v_cndmask_b32 v{vM+d}, 0, v23, vcc")
    A(f"v_mov_b32 v{vm}, 0xff800000")
    A(f"v_mov_b32 v{vl}, 0")
    for i in range(4): A(f"v_mov_b32 v{vO+i}, 0")
    A(f"s_mov_b32 s30, {hex(f2u(CSC))}")
    A(f"s_mov_b32 s31, {hex(f2u(-CSC))}")
    A("s_lshl_b32 s26, s21, 23")
    A("s_lshl_b32 s27, s22, 2")
    A("s_add_u32 s27, s27, s23")
    A("s_waitcnt lgkmcnt(0)")
    A("s_mov_b32 s8, s4"); A("s_mov_b32 s9, s5"); A(f"s_mov_b32 s10, {hex(DEAD)}"); A("s_mov_b32 s11, 0x20000")
    A("s_mov_b32 s12, s6"); A("s_mov_b32 s13, s7"); A(f"s_mov_b32 s14, {hex(DEAD)}"); A("s_mov_b32 s15, 0x20000")
    if dbg:
        A("s_mov_b32 s16, s24"); A("s_mov_b32 s17, s25"); A("s_mov_b32 s18, 0"); A("s_mov_b32 s19, 0x20000")
    A("s_barrier")

    def static_off(n):
        k = n % R
        A(f"s_add_u32 s29, s27, {32*n}")
        A("s_lshl_b32 s29, s29, 12")
        A(f"s_add_u32 s{sOFF+k}, s29, s26")
    def issueK(n):
        k = n % R
        for u in range(4):
            r = kreg(k, u)
            A.vmem(f"buffer_load_dwordx4 v[{r}:{r+3}], v{vKA}, s[8:11], s{sOFF+k} offen offset:{u*64} nt", ("K", n))
    def issueV(n):
        k = n % R
        for u in range(4):
            r = vreg(k, u)
            A.vmem(f"buffer_load_dwordx4 v[{r}:{r+3}], v{vVA}, s[12:15], s{sOFF+k} offen offset:{u*1024} nt", ("V", n))
    def qk_mfma(n):
        k = n % R
        for u in range(4):
            r = kreg(k, u)
            c = "0" if u == 0 else f"v[{vS}:{vS+3}]"
            A(f"v_mfma_f32_16x16x32_bf16 v[{vS}:{vS+3}], v[{r}:{r+3}], v[{vQ+4*u}:{vQ+4*u+3}], {c}")
    def softmax(n, pad):
        if pad > 0: A(f"s_nop {pad-1}")
        A(f"v_max3_f32 v{vT}, v{vS}, v{vS+1}, v{vS+2}")
        A(f"v_max_f32 v{vT}, v{vT}, v{vS+3}")
        A(f"v_mov_b32 v{vU}, v{vT}")
        A("s_nop 1")
        A(f"v_permlane16_swap_b32 v{vT}, v{vU}")
        A(f"v_max_f32 v{vT}, v{vT}, v{vU}")
        A(f"v_mov_b32 v{vU}, v{vT}")
        A("s_nop 1")
        A(f"v_permlane32_swap_b32 v{vT}, v{vU}")
        A(f"v_max3_f32 v{vT}, v{vT}, v{vU}, v{vm}")
        A(f"v_mul_f32 v{vNM}, s31, v{vT}")
        A(f"v_fma_f32 v{vAL}, v{vm}, s30, v{vNM}")
        for i in range(4):
            A(f"v_fma_f32 v{vP+i}, v{vS+i}, s30, v{vNM}")
        A(f"v_exp_f32 v{vAL}, v{vAL}")
        for i in range(4):
            A(f"v_exp_f32 v{vP+i}, v{vP+i}")
        A(f"v_mov_b32 v{vm}, v{vT}")
        for i in range(4):
            A(f"v_mul_f32 v{vO+i}, v{vO+i}, v{vAL}")
        A(f"v_add_f32 v{vT}, v{vP}, v{vP+1}")
        A(f"v_add_f32 v{vU}, v{vP+2}, v{vP+3}")
        for i in range(4):
            A(f"v_cvt_pk_bf16_f32 v{vP+i}, v{vP+i}, v{vP+i}")
        A(f"v_add_f32 v{vT}, v{vT}, v{vU}")
        A(f"v_fma_f32 v{vl}, v{vl}, v{vAL}, v{vT}")
        for i in range(4):
            for d in range(4):
                A(f"v_and_b32 v{vA+4*i+d}, v{vP+i}, v{vM+d}")
    def pv_mfma(n):
        k = n % R
        for u in range(4):
            r = vreg(k, u)
            A(f"v_mfma_f32_16x16x32_bf16 v[{vO}:{vO+3}], v[{vA+4*u}:{vA+4*u+3}], v[{r}:{r+3}], v[{vO}:{vO+3}]")

    units = []
    def issue_unit(u):
        n = u // 2
        if u % 2 == 0:
            static_off(n); issueK(n)
        else:
            issueV(n)
    def land_unit(u):
        A.wait_tag(("K" if u % 2 == 0 else "V", u // 2))
    for u in range(F): issue_unit(u)
    for u in range(2 * R - F):
        land_unit(u); issue_unit(u + F)
    ST(1)
    A("s_barrier")
    ST(2)
    A("v_lshrrev_b32 v20, 4, v0")
    A("v_lshlrev_b32 v20, 4, v20")
    for s in range(4):
        A(f"ds_read_b128 v[{vQ+4*s}:{vQ+4*s+3}], v20 offset:{L_Q + s*64}")
    A("s_waitcnt lgkmcnt(0)")
    P = 0; I = 2 * R; Ld = 2 * R - F
    def proc_unit(u):
        n = u // 2
        if u % 2 == 0:
            qk_mfma(n); softmax(n, 8)
        else:
            A("s_nop 1")
            pv_mfma(n)
    state_ok = lambda: (P == Ld and P % 2 == 0 and I == P + F)
    steps = 0
    while not state_ok():
        steps += 1
        assert steps < 100
        while P <= I - 2 * R:
            proc_unit(P); P += 1
        if I - Ld < F or True:
            land_unit(Ld); Ld += 1
            issue_unit(I); I += 1
        k = 0
        while P < Ld and k < 2:
            proc_unit(P); P += 1; k += 1
        if P == Ld and P % 2 == 1:
            land_unit(Ld); Ld += 1
            issue_unit(I); I += 1
            proc_unit(P); P += 1
    n0 = P // 2
    assert I == 2 * n0 + 2
    A.c(f"catch-up done: loop starts at item {n0}, slot {n0 % R}")
    ST(3)
    assert n0 + 2 <= NS
    POOL = NI - 32 * NS
    vTKD = 60
    A(f"s_add_u32 s27, s27, {32*(n0+1)}")
    A(f"s_mov_b32 s28, {n0+1}")
    A(f"v_mov_b32 v{vCTR}, {L_TK - 4*(NS - (n0+2))}")
    A(f"v_mov_b32 v{vTICK}, {n0+1}")
    A("s_lshl_b32 s29, s23, 2")
    A(f"s_add_u32 s29, s29, {L_PROG}")
    A("v_mov_b32 v1, s29")
    A(f"s_add_u32 s35, s23, {32*NS}")
    if dbg:
        A("s_mov_b32 s60, 0"); A("s_mov_b32 s61, 0")
    A.lab("L_loop")
    spins = []
    for kk in range(R):
        n = n0 + kk
        k = n % R; k2 = (n + 1) % R
        A.c(f"--- item slot {k}")
        A(f"s_cmp_ge_u32 s{sOFF+k}, {hex(DEAD)}")
        A("s_cbranch_scc1 L_fin")
        A(f"s_cmp_lt_u32 s28, {NS}")
        A(f"s_cbranch_scc1 L_stat{kk}")
        A("s_waitcnt lgkmcnt(0)")
        A(f"v_readfirstlane_b32 s29, v{vTKD}")
        A("s_cmp_eq_u32 s29, -1")
        A(f"s_cbranch_scc1 L_spin{kk}")
        A.lab(f"L_back{kk}")
        A("s_add_u32 s27, s29, s35")
        A.lab(f"L_stat{kk}")
        A("s_lshl_b32 s33, s27, 12")
        A("s_add_u32 s33, s33, s26")
        A(f"s_cmp_lt_u32 s27, {NI}")
        A(f"s_cselect_b32 s{sOFF+k2}, s33, {hex(DEAD)}")
        if dbg:
            A("s_cselect_b32 s62, s27, 0")
            A("s_cselect_b32 s63, 1, 0")
            A("s_add_u32 s60, s60, s62")
            A("s_add_u32 s61, s61, s63")
        A("s_add_u32 s27, s27, 32")
        A("s_add_u32 s28, s28, 1")
        A("s_waitcnt vmcnt(4)")
        for u in range(4):
            r = kreg(k2, u)
            A(f"buffer_load_dwordx4 v[{r}:{r+3}], v{vKA}, s[8:11], s{sOFF+k2} offen offset:{u*64} nt")
        A(f"ds_write_b32 v1, v{vTICK}")
        A(f"ds_read_b32 v{vTKD}, v{vCTR}")
        qk_mfma(n)
        A(f"v_add_u32 v{vTICK}, 1, v{vTICK}")
        A(f"v_add_u32 v{vCTR}, 4, v{vCTR}")
        softmax(n, 6)
        A("s_waitcnt vmcnt(4)")
        for u in range(4):
            r = vreg(k2, u)
            A(f"buffer_load_dwordx4 v[{r}:{r+3}], v{vVA}, s[12:15], s{sOFF+k2} offen offset:{u*1024} nt")
        pv_mfma(n)
        spins.append(kk)
    A("s_branch L_loop")
    for kk in spins:
        A.lab(f"L_spin{kk}")
        A(f"s_mov_b32 s34, {POLL_LIMIT}")
        A(f"v_add_u32 v{vT}, -4, v{vCTR}")
        A.lab(f"L_spin{kk}_l")
        A(f"ds_read_b32 v{vTKD}, v{vT}")
        A("s_waitcnt lgkmcnt(0)")
        A(f"v_readfirstlane_b32 s29, v{vTKD}")
        A("s_cmp_lg_u32 s29, -1")
        A(f"s_cbranch_scc1 L_back{kk}")
        A("s_sleep 1")
        A("s_sub_u32 s34, s34, 1")
        A("s_cmp_lg_u32 s34, 0")
        A(f"s_cbranch_scc1 L_spin{kk}_l")
        A(f"s_mov_b32 s29, {POOL}")
        A(f"s_branch L_back{kk}")
    A.lab("L_fin")
    A("s_nop 7")
    A("v_lshrrev_b32 v20, 4, v0")
    A("v_and_b32 v21, 15, v0")
    A("s_lshl_b32 s29, s23, 5")
    A(f"s_add_u32 s29, s29, {L_ML}")
    A("v_lshlrev_b32 v22, 2, v20")
    A("v_add_u32 v22, s29, v22")
    A(f"ds_write_b32 v22, v{vl}")
    A("v_mov_b32 v22, s29")
    A(f"ds_write_b32 v22, v{vm} offset:16")
    A("s_lshl_b32 s29, s23, 9")
    A(f"s_add_u32 s29, s29, {L_PART}")
    A("v_lshlrev_b32 v22, 5, v21")
    A("v_lshl_add_u32 v22, v20, 4, v22")
    A("v_add_u32 v22, s29, v22")
    A("s_mov_b32 exec_hi, 0")
    A(f"ds_write_b128 v22, v[{vO}:{vO+3}]")
    A("s_mov_b32 exec_hi, -1")
    ST(4)
    A("s_waitcnt lgkmcnt(0)")
    A("s_barrier")
    ST(5)
    A("s_waitcnt vmcnt(0)")
    if dbg:
        A("s_lshl_b32 s29, s2, 2")
        A("s_add_u32 s29, s29, s23")
        A("s_lshl_b32 s29, s29, 3")
        A(f"s_add_u32 s29, s29, {WS_DBG + 0x10000}")
        A("v_mov_b32 v8, s60"); A("v_mov_b32 v9, s61"); A("v_mov_b32 v12, 0")
        A(f"s_mov_b32 s18, {hex(WS_SIZE)}")
        A("s_mov_b64 exec, 1")
        A("buffer_store_dwordx2 v[8:9], v12, s[16:19], s29 offen")
        A("s_waitcnt vmcnt(0)")
    if stamp:
        stamp_out(A, 0)
    A("s_endpgm")

    A.lab("L_helper")
    A.vm = []
    A("s_load_dwordx2 s[4:5], s[0:1], 0")
    A("s_load_dwordx4 s[36:39], s[0:1], 24")
    A("s_load_dwordx4 s[44:47], s[0:1], 48")
    A("s_load_dwordx4 s[48:51], s[0:1], 64")
    if prio: A("s_setprio 3")
    hE = 2
    hT = 4
    hX = 8
    hF = 12
    hW = 64
    hM = 20
    hD = 28
    A("v_and_b32 v32, 15, v0")
    A("v_lshrrev_b32 v33, 4, v0")
    A("s_lshl_b32 s29, s22, 19")
    A("s_lshl_b32 s30, s21, 8")
    A("s_add_u32 s29, s29, s30")
    A("v_lshlrev_b32 v34, 17, v33")
    A("v_lshl_add_u32 v34, v32, 4, v34")
    A("v_add_u32 v34, s29, v34")
    A("v_lshlrev_b32 v35, 4, v0")
    A("v_mov_b32 v36, 0")
    A("s_waitcnt lgkmcnt(0)")
    A("s_mov_b32 s12, s24"); A("s_mov_b32 s13, s25"); A(f"s_mov_b32 s14, {hex(WS_SIZE)}"); A("s_mov_b32 s15, 0x20000")
    A("s_mov_b32 s8, s4"); A("s_mov_b32 s9, s5"); A("s_mov_b32 s10, 1024"); A("s_mov_b32 s11, 0x20000")
    A("s_mov_b32 s16, s36"); A("s_mov_b32 s17, s37"); A(f"s_mov_b32 s18, {512*8192}"); A("s_mov_b32 s19, 0x20000")
    A.vmem(f"buffer_load_dwordx4 v[{hX}:{hX+3}], v35, s[8:11], 0 offen", "x")
    A.vmem(f"buffer_load_dwordx2 v[{hE}:{hE+1}], v36, s[12:15], 0 offen sc1", "E")
    for i in range(16):
        A(f"s_mov_b32 s29, {i*8192}")
        if wq_on or i == 0: A.vmem(f"buffer_load_dwordx4 v[{hW+4*i}:{hW+4*i+3}], v34, s[16:19], s29 offen {nt_w}", "wq")
    A("s_barrier")
    A("s_cmp_lg_u32 s22, 0")
    A("s_cbranch_scc1 L_nozero")
    A("s_lshl_b32 s29, s21, 7")
    A(f"s_add_u32 s29, s29, {WS_TICK}")
    A("s_mov_b64 exec, 1")
    A("buffer_store_dword v36, v36, s[12:15], s29 offen sc1")
    A("s_mov_b64 exec, -1")
    A.lab("L_nozero")
    A("v_lshlrev_b32 v37, 2, v0")
    A("v_mov_b32 v38, -1")
    for q in range(3):
        A(f"ds_write_b32 v37, v38 offset:{L_TK + 256*q}")
    A(f"ds_write_b32 v37, v36 offset:{L_PROG}")
    A("v_and_b32 v37, 1, v32")
    A("v_mov_b32 v38, 0xffff")
    A("v_mov_b32 v39, 0xffff0000")
    A("v_cmp_eq_u32 vcc, 1, v37")
    A("v_lshrrev_b32 v40, 1, v32")
    A("v_and_b32 v41, 3, v40")
    A("v_cndmask_b32 v38, v38, v39, vcc")
    for d in range(4):
        A(f"v_cmp_eq_u32 vcc, {d}, v40")
        A("s_nop 1")
        A(f"v_cndmask_b32 v{hM+d}, 0, v38, vcc")
        A(f"v_cmp_eq_u32 vcc, {d}, v41")
        A("s_nop 1")
        A(f"v_cndmask_b32 v{hM+4+d}, 0, v38, vcc")
    ST(1)
    A(f"s_waitcnt vmcnt({16 if wq_on else 1})")
    for q in range(4):
        A(f"v_lshlrev_b32 v{hF+2*q}, 16, v{hX+q}")
        A(f"v_and_b32 v{hF+2*q+1}, 0xffff0000, v{hX+q}")
    A(f"v_add_co_u32 v{hT}, vcc, 1, v{hE}")
    A("s_nop 1")
    A(f"v_addc_co_u32 v{hT+1}, vcc, 0, v{hE+1}, vcc")
    A(f"v_add_f32 v42, v{hF}, v{hF+1}")
    for q in range(2, 8):
        A(f"v_add_f32 v42, v42, v{hF+q}")
    allreduce(A, "v_add_f32", 42, 43)
    A(f"v_mul_f32 v42, {hex(f2u(1/512))}, v42")
    A(f"v_sub_f32 v44, v{hF}, v42")
    A("v_mul_f32 v45, v44, v44")
    for q in range(1, 8):
        A(f"v_sub_f32 v44, v{hF+q}, v42")
        A("v_fmac_f32 v45, v44, v44")
    allreduce(A, "v_add_f32", 45, 43)
    A(f"v_mul_f32 v45, {hex(f2u(1/512))}, v45")
    rne_hi(A, 42, 42)
    rne_hi(A, 45, 45)
    A(f"v_add_f32 v45, {hex(f2u(1e-5))}, v45")
    rne_hi(A, 45, 45)
    A("v_sqrt_f32 v45, v45")
    A("s_nop 0")
    rne_hi(A, 45, 45)
    A("v_rcp_f32 v46, v45")
    for q in range(8):
        A(f"v_sub_f32 v{hF+q}, v{hF+q}, v42")
        rne_hi(A, hF + q, hF + q)
        A(f"v_mul_f32 v44, v{hF+q}, v46")
        A(f"v_fma_f32 v47, -v44, v45, v{hF+q}")
        A(f"v_fma_f32 v44, v47, v46, v44")
        rne_hi(A, hF + q, 44)
    A("v_lshlrev_b32 v44, 5, v0")
    A(f"ds_write_b128 v44, v[{hF}:{hF+3}] offset:{L_XN}")
    A(f"ds_write_b128 v44, v[{hF+4}:{hF+7}] offset:{L_XN+16}")
    A("s_lshl_b32 s29, s22, 8")
    A("v_lshlrev_b32 v44, 6, v33")
    A("v_add_u32 v44, s29, v44")
    A("s_waitcnt lgkmcnt(0)")
    hXA = 128
    for q in range(4):
        A(f"ds_read_b128 v[{hXA+4*q}:{hXA+4*q+3}], v44 offset:{L_XN+16*q}")
    A("s_waitcnt lgkmcnt(0)")
    for i in range(16):
        A(f"v_cvt_pk_bf16_f32 v{hXA+i}, v{hXA+i}, v{hXA+i}")
    A("s_waitcnt vmcnt(0)")
    ST(2)
    hA = 144
    for i in range(16):
        a = hA + 4 * (i & 1)
        for d in range(4):
            A(f"v_and_b32 v{a+d}, v{hXA+i}, v{hM+d}")
        A("s_nop 1")
        c = "0" if i == 0 else f"v[{hD}:{hD+3}]"
        A(f"v_mfma_f32_16x16x32_bf16 v[{hD}:{hD+3}], v[{a}:{a+3}], v[{hW+4*i}:{hW+4*i+3}], {c}")
    A("s_lshl_b32 s29, s2, 10")
    A(f"s_add_u32 s29, s29, {WS_QP}")
    A("v_and_b32 v44, 1, v33")
    A("v_lshlrev_b32 v44, 5, v44")
    A("v_lshrrev_b32 v45, 1, v33")
    A("v_lshl_add_u32 v44, v45, 4, v44")
    A("v_lshl_add_u32 v6, v32, 6, v44")
    A("s_nop 3")
    def publish1(dreg, vaddr, soff):
        A(f"v_permlane32_swap_b32 v{dreg}, v{dreg+2}")
        A(f"v_permlane32_swap_b32 v{dreg+1}, v{dreg+3}")
        A(f"v_mov_b32 v50, v{hT}"); A(f"v_mov_b32 v51, v{hT+1}")
        A(f"v_mov_b32 v48, v{dreg}"); A(f"v_mov_b32 v49, v{dreg+1}")
        A(f"buffer_store_dwordx4 v[48:51], v{vaddr}, s[12:15], {soff} offen sc1")
    publish1(hD, 6, "s29")
    def poll(label, loads, nregs_tagpairs, extra_ok=None, sleep=0):
        A(f"s_mov_b32 s34, {POLL_LIMIT}")
        A.lab(label)
        loads()
        A("s_waitcnt vmcnt(0)")
        A("s_mov_b64 s[30:31], -1")
        for idx, tp in enumerate(nregs_tagpairs):
            A(f"v_cmp_eq_u64 vcc, v[{tp}:{tp+1}], v[{hT}:{hT+1}]")
            if extra_ok and idx in extra_ok:
                A(f"s_or_b64 vcc, vcc, {extra_ok[idx]}")
            A("s_and_b64 s[30:31], s[30:31], vcc")
        A("s_cmp_eq_u64 s[30:31], -1")
        A(f"s_cbranch_scc1 {label}_ok")
        if sleep: A(f"s_sleep {sleep}")
        A("s_sub_u32 s34, s34, 1")
        A("s_cmp_lg_u32 s34, 0")
        A(f"s_cbranch_scc1 {label}")
        A.lab(label + "_ok")
    hG = 64
    A("s_lshl_b32 s29, s21, 13")
    A(f"s_add_u32 s29, s29, {WS_QP}")
    def qloads():
        for jj in range(8):
            A(f"s_add_u32 s33, s29, {jj*1024}")
            A(f"buffer_load_dwordx4 v[{hG+4*jj}:{hG+4*jj+3}], v35, s[12:15], s33 offen sc1")
    if cheapq:
        A("v_lshlrev_b32 v45, 10, v0")
        A("v_add_u32 v45, 1008, v45")
        A(f"v_mov_b32 v46, {hex(OOBV)}")
        A("v_cmp_gt_u32 vcc, 8, v0")
        A("s_nop 1")
        A("v_cndmask_b32 v45, v46, v45, vcc")
        A("s_mov_b32 s52, 0xffffff00"); A("s_mov_b32 s53, -1")
        def qpre():
            A(f"buffer_load_dwordx4 v[{hG}:{hG+3}], v45, s[12:15], s29 offen sc1")
        poll("L_pq0", qpre, [hG + 2], extra_ok={0: "s[52:53]"}, sleep=psleep)
    poll("L_pq", qloads, [hG + 4 * jj + 2 for jj in range(8)])
    A(f"v_add_f32 v44, v{hG}, v{hG+4}")
    A(f"v_add_f32 v45, v{hG+1}, v{hG+5}")
    for jj in range(2, 8):
        A(f"v_add_f32 v44, v44, v{hG+4*jj}")
        A(f"v_add_f32 v45, v45, v{hG+4*jj+1}")
    A("v_cvt_pk_bf16_f32 v44, v44, v45")
    A("v_lshlrev_b32 v45, 2, v0")
    A(f"ds_write_b32 v45, v44 offset:{L_Q}")
    A("s_waitcnt lgkmcnt(0)")
    ST(3)
    A("s_barrier")
    if prio: A("s_setprio 0")

    for w in range(256):
        assert (w * 171) >> 10 == w // 6
    A("s_mul_i32 s29, s2, 171")
    A("s_lshr_b32 s29, s29, 10")
    A("s_mul_i32 s30, s29, 6")
    A("s_cmp_lg_u32 s30, s2")
    A("s_cbranch_scc1 L_noffn")
    if not ffn: A("s_branch L_noffn")
    A("s_mov_b32 s35, s29")
    A("s_mov_b32 s8, s44"); A("s_mov_b32 s9, s45"); A(f"s_mov_b32 s10, {512*2752}"); A("s_mov_b32 s11, 0x20000")
    A("s_mov_b32 s16, s46"); A("s_mov_b32 s17, s47"); A(f"s_mov_b32 s18, {512*2752}"); A("s_mov_b32 s19, 0x20000")
    A("v_lshrrev_b32 v44, 2, v0")
    A("v_and_b32 v45, 3, v0")
    A(f"s_mov_b32 s30, {32*2752}")
    A("v_mul_lo_u32 v46, v44, s30")
    A("v_lshl_add_u32 v46, v45, 4, v46")
    A("s_lshl_b32 s30, s35, 6")
    A("v_add_u32 v46, s30, v46")
    A("v_lshlrev_b32 v47, 7, v44")
    hAG = 12
    hAU = 56
    for q in range(8):
        A(f"v_mov_b32 v{hAG+q}, 0"); A(f"v_mov_b32 v{hAU+q}, 0")
    A("s_mov_b32 s31, 0")
    A("s_mov_b32 s32, 4")
    A.lab("L_f1")
    for i in range(8):
        A(f"s_add_u32 s33, s31, {i*2752}")
        if ffn_s1:
            A(f"buffer_load_dwordx4 v[{64+4*i}:{64+4*i+3}], v46, s[8:11], s33 offen {ffn_nt}")
            A(f"buffer_load_dwordx4 v[{96+4*i}:{96+4*i+3}], v46, s[16:19], s33 offen {ffn_nt}")
    A(f"ds_read_b128 v[128:131], v47 offset:{L_XN}")
    A(f"ds_read_b128 v[132:135], v47 offset:{L_XN+16}")
    A("v_add_u32 v47, 32, v47")
    A(f"s_add_u32 s31, s31, {8*2752}")
    A("s_waitcnt vmcnt(0) lgkmcnt(0)")
    for i in range(8 if ffn_comp else 0):
        for (base, acc) in ((64, hAG), (96, hAU)):
            for q in range(4):
                r = base + 4 * i + q
                A(f"v_lshlrev_b32 v44, 16, v{r}")
                A(f"v_and_b32 v45, 0xffff0000, v{r}")
                A(f"v_fmac_f32 v{acc+2*q}, v44, v{128+i}")
                A(f"v_fmac_f32 v{acc+2*q+1}, v45, v{128+i}")
    A("s_sub_u32 s32, s32, 1")
    A("s_cmp_lg_u32 s32, 0")
    A("s_cbranch_scc1 L_f1")
    for q in range(8):
        allreduce(A, "v_add_f32", hAG + q, 44, rors=(4, 8))
        allreduce(A, "v_add_f32", hAU + q, 44, rors=(4, 8))
    for q in range(8):
        rne_hi(A, hAG + q, hAG + q)
        silu(A, hAG + q, hAG + q, 44)
        rne_hi(A, hAG + q, hAG + q)
        rne_hi(A, hAU + q, hAU + q)
        A(f"v_mul_f32 v{hAG+q}, v{hAG+q}, v{hAU+q}")
        rne_hi(A, hAG + q, hAG + q)
    A("v_and_b32 v45, 3, v0")
    A("v_lshlrev_b32 v45, 5, v45")
    A("s_mov_b64 exec, 15")
    A(f"ds_write_b128 v45, v[{hAG}:{hAG+3}] offset:{L_H}")
    A(f"ds_write_b128 v45, v[{hAG+4}:{hAG+7}] offset:{L_H+16}")
    A("s_mov_b64 exec, -1")
    A("s_mov_b32 s8, s48"); A("s_mov_b32 s9, s49"); A(f"s_mov_b32 s10, {1376*1024}"); A("s_mov_b32 s11, 0x20000")
    A("s_lshl_b32 s31, s35, 15")
    A(f"v_mov_b32 v47, {L_H}")
    for q in range(8): A(f"v_mov_b32 v{hAU+q}, 0")
    A("s_mov_b32 s32, 4")
    A("s_waitcnt lgkmcnt(0)")
    A.lab("L_f2")
    for i in range(8):
        A(f"s_add_u32 s33, s31, {i*1024}")
        if ffn_s2: A(f"buffer_load_dwordx4 v[{64+4*i}:{64+4*i+3}], v35, s[8:11], s33 offen {ffn_nt}")
    A("ds_read_b128 v[128:131], v47")
    A("ds_read_b128 v[132:135], v47 offset:16")
    A("v_add_u32 v47, 32, v47")
    A(f"s_add_u32 s31, s31, {8*1024}")
    A("s_waitcnt vmcnt(0) lgkmcnt(0)")
    for i in range(8 if ffn_comp else 0):
        for q in range(4):
            r = 64 + 4 * i + q
            A(f"v_lshlrev_b32 v44, 16, v{r}")
            A(f"v_and_b32 v45, 0xffff0000, v{r}")
            A(f"v_fmac_f32 v{hAU+2*q}, v44, v{128+i}")
            A(f"v_fmac_f32 v{hAU+2*q+1}, v45, v{128+i}")
    A("s_sub_u32 s32, s32, 1")
    A("s_cmp_lg_u32 s32, 0")
    A("s_cbranch_scc1 L_f2")
    A("v_lshlrev_b32 v44, 5, v0")
    A(f"ds_write_b128 v44, v[{hAU}:{hAU+3}] offset:{L_FT}")
    A(f"ds_write_b128 v44, v[{hAU+4}:{hAU+7}] offset:{L_FT+16}")
    A("v_lshlrev_b32 v44, 3, v0")
    A("s_waitcnt lgkmcnt(0)")
    for q in range(4):
        A(f"ds_read_b64 v[{64+4*q}:{64+4*q+1}], v44 offset:{L_FT + 512*q}")
        A(f"v_mov_b32 v{64+4*q+2}, v{hT}"); A(f"v_mov_b32 v{64+4*q+3}, v{hT+1}")
    A("s_lshl_b32 s29, s35, 12")
    A(f"s_add_u32 s29, s29, {WS_FP}")
    A("s_waitcnt lgkmcnt(0)")
    for q in range(4):
        A(f"buffer_store_dwordx4 v[{64+4*q}:{64+4*q+3}], v35, s[12:15], s29 offen offset:{1024*q} sc1")
    A.lab("L_noffn")

    A("s_mov_b32 s16, s38"); A("s_mov_b32 s17, s39"); A(f"s_mov_b32 s18, {4096*1024}"); A("s_mov_b32 s19, 0x20000")
    hWO = 160
    A("v_lshrrev_b32 v44, 3, v0")
    A("v_lshlrev_b32 v44, 14, v44")
    A("v_and_b32 v45, 7, v0")
    A("v_lshl_add_u32 v44, v45, 4, v44")
    A("s_lshl_b32 s29, s21, 17")
    A("s_lshl_b32 s30, s22, 7")
    A("s_add_u32 s29, s29, s30")
    for i in range(16):
        A(f"s_add_u32 s33, s29, {i*1024}")
        if wo_on: A(f"buffer_load_dwordx4 v[{hWO+4*i}:{hWO+4*i+3}], v44, s[16:19], s33 offen {nt_w}")

    A("s_lshl_b32 s29, s21, 7")
    A(f"s_add_u32 s29, s29, {WS_TICK}")
    A("v_mov_b32 v44, s29")
    A(f"v_mov_b32 v45, {hex(OOBV)}")
    A("v_cmp_eq_u32 vcc, 0, v0")
    A(f"v_mov_b32 v46, {L_PROG}")
    A(f"v_mov_b32 v47, {L_TK}")
    A("v_cndmask_b32 v44, v45, v44, vcc")
    A(f"s_mov_b32 s36, {NS - LEAD}")
    A("s_mov_b32 s37, 0")
    A.lab("L_tk")
    A(f"s_mov_b32 s34, {POLL_LIMIT}")
    A.lab("L_tkw")
    A("ds_read_b128 v[64:67], v46")
    A("s_waitcnt lgkmcnt(0)")
    A("v_max3_u32 v64, v64, v65, v66")
    A("v_max_u32 v64, v64, v67")
    A("s_nop 0")
    A("v_readfirstlane_b32 s29, v64")
    A("s_cmp_ge_u32 s29, s36")
    A("s_cbranch_scc1 L_tkgo")
    A(f"s_sleep {psleep}")
    A("s_sub_u32 s34, s34, 1")
    A("s_cmp_lg_u32 s34, 0")
    A("s_cbranch_scc1 L_tkw")
    A.lab("L_tkgo")
    A("v_mov_b32 v65, 4")
    A("buffer_atomic_add v65, v44, s[12:15], 0 offen sc0 sc1")
    A("s_waitcnt vmcnt(0)")
    A("v_readfirstlane_b32 s29, v65")
    A("s_cmp_lt_u32 s37, 180")
    A(f"s_cselect_b32 s29, s29, {NI - 32*NS}")
    A("v_mov_b32 v65, s29")
    A("ds_write_b32 v47, v65")
    A("v_add_u32 v47, 4, v47")
    A("s_add_u32 s36, s36, 1")
    A("s_add_u32 s37, s37, 1")
    A(f"s_cmp_lt_u32 s29, {NI - 32*NS}")
    A("s_cbranch_scc1 L_tk")

    A("s_and_b32 s29, s21, 7")
    A("s_cmp_lg_u32 s29, s22")
    A("s_cbranch_scc1 L_nocons1")
    hGG = 56
    A("v_lshrrev_b32 v45, 3, v0")
    A("v_lshlrev_b32 v45, 12, v45")
    A("v_and_b32 v46, 7, v0")
    A("v_lshl_add_u32 v45, v46, 4, v45")
    A("s_lshl_b32 s29, s21, 7")
    A(f"s_add_u32 s29, s29, {WS_FP}")
    A(f"v_mov_b32 v47, {hex(OOBV)}")
    A("v_cmp_gt_u32 vcc, 24, v0")
    A("s_nop 1")
    A("v_cndmask_b32 v47, v47, v45, vcc")
    A("s_mov_b32 s52, 0xff000000"); A("s_mov_b32 s53, -1")
    def floads():
        for k in range(6):
            A(f"s_add_u32 s33, s29, {k*8*4096}")
            va = 47 if k == 5 else 45
            A(f"buffer_load_dwordx4 v[{64+4*k}:{64+4*k+3}], v{va}, s[12:15], s33 offen sc1")
    if ffn and not gexp:
        poll("L_pf", floads, [64 + 4 * k + 2 for k in range(6)], extra_ok={5: "s[52:53]"}, sleep=gsleep)
    A("v_add_f32 v56, v64, v68"); A("v_add_f32 v57, v65, v69")
    for k in range(2, 6):
        A(f"v_add_f32 v56, v56, v{64+4*k}"); A(f"v_add_f32 v57, v57, v{64+4*k+1}")
    allreduce(A, "v_add_f32", 56, 44, rors=(8,))
    allreduce(A, "v_add_f32", 57, 44, rors=(8,))
    for r in (56, 57):
        rne_hi(A, r, r)
        silu(A, r, r, 44)
        rne_hi(A, r, r)
    A("s_mov_b32 s8, s4"); A("s_mov_b32 s9, s5"); A("s_mov_b32 s10, 1024"); A("s_mov_b32 s11, 0x20000")
    A("s_lshl_b32 s29, s21, 5")
    A("v_lshlrev_b32 v46, 2, v46")
    A("buffer_load_dword v58, v46, s[8:11], s29 offen")
    A("s_waitcnt vmcnt(0)")
    A("v_and_b32 v59, 0xffff0000, v58")
    A("v_lshlrev_b32 v58, 16, v58")
    A.lab("L_nocons1")

    A("s_waitcnt vmcnt(0)")
    A("s_barrier")
    if prio: A("s_setprio 3")
    ST(4)
    A("v_mov_b32 v44, 0")
    for w in range(4):
        A(f"ds_read_b128 v[{64+4*w}:{64+4*w+3}], v44 offset:{L_ML+32*w}")
        A(f"ds_read_b32 v{80+w}, v44 offset:{L_ML+32*w+16}")
    A("v_lshlrev_b32 v45, 3, v0")
    for w in range(4):
        A(f"ds_read_b64 v[{84+2*w}:{84+2*w+1}], v45 offset:{L_PART+512*w}")
    A(f"s_mov_b32 s30, {hex(f2u(CSC))}")
    A(f"s_mov_b32 s31, {hex(f2u(-CSC))}")
    A("s_waitcnt lgkmcnt(0)")
    A("v_max3_f32 v92, v80, v81, v82")
    A("v_max_f32 v92, v92, v83")
    A("v_mul_f32 v93, s31, v92")
    for w in range(4):
        A(f"v_fma_f32 v{80+w}, v{80+w}, s30, v93")
    for w in range(4):
        A(f"v_exp_f32 v{80+w}, v{80+w}")
    for w in range(4):
        A(f"v_add_f32 v{64+4*w}, v{64+4*w}, v{64+4*w+1}")
        A(f"v_add_f32 v{64+4*w+2}, v{64+4*w+2}, v{64+4*w+3}")
        A(f"v_add_f32 v{64+4*w}, v{64+4*w}, v{64+4*w+2}")
    A("v_mul_f32 v94, v64, v80")
    A("v_mul_f32 v48, v84, v80")
    A("v_mul_f32 v49, v85, v80")
    for w in range(1, 4):
        A(f"v_fmac_f32 v94, v{64+4*w}, v{80+w}")
        A(f"v_fmac_f32 v48, v{84+2*w}, v{80+w}")
        A(f"v_fmac_f32 v49, v{85+2*w}, v{80+w}")
    A(f"v_mov_b32 v50, v{hT}"); A(f"v_mov_b32 v51, v{hT+1}")
    A("v_mov_b32 v52, v92"); A("v_mov_b32 v53, v94"); A(f"v_mov_b32 v54, v{hT}"); A(f"v_mov_b32 v55, v{hT+1}")
    A("s_lshl_b32 s29, s2, 11")
    A(f"s_add_u32 s29, s29, {WS_P1}")
    A("buffer_store_dwordx4 v[48:51], v35, s[12:15], s29 offen sc1")
    A("s_mov_b64 exec, 1")
    A("buffer_store_dwordx4 v[52:55], v36, s[12:15], s29 offen offset:1024 sc1")
    A("s_mov_b64 exec, -1")
    A("s_lshl_b32 s29, s21, 14")
    A(f"s_add_u32 s29, s29, {WS_P1}")
    A("v_and_b32 v45, 7, v0")
    A("v_lshlrev_b32 v45, 11, v45")
    def ploads():
        A(f"buffer_load_dwordx4 v[96:99], v45, s[12:15], s29 offen offset:1024 sc1")
        for jj in range(8):
            A(f"s_add_u32 s33, s29, {jj*2048}")
            A(f"buffer_load_dwordx4 v[{64+4*jj}:{64+4*jj+3}], v35, s[12:15], s33 offen sc1")
    poll("L_pp", ploads, [98] + [64 + 4 * jj + 2 for jj in range(8)])
    ST(5)
    A(f"s_mov_b32 s30, {hex(f2u(CSC))}")
    A(f"s_mov_b32 s31, {hex(f2u(-CSC))}")
    A("v_mov_b32 v100, v96")
    allreduce(A, "v_max_f32", 100, 44, rors=(4, 2, 1), x16=False, x32=False)
    A("v_mul_f32 v101, s31, v100")
    A("v_fma_f32 v101, v96, s30, v101")
    A("v_exp_f32 v101, v101")
    A("s_nop 0")
    A("v_mul_f32 v102, v101, v97")
    allreduce(A, "v_add_f32", 102, 44, rors=(4, 2, 1), x16=False, x32=False)
    A("v_rcp_f32 v103, v102")
    A("s_nop 0")
    A("v_fma_f32 v104, -v102, v103, 1.0")
    A("v_fma_f32 v103, v104, v103, v103")
    A("v_mul_f32 v101, v101, v103")
    A("s_nop 0")
    for jj in range(8):
        A(f"v_readlane_b32 s{56+jj}, v101, {jj}")
    A("s_nop 1")
    A("v_mul_f32 v48, s56, v64"); A("v_mul_f32 v49, s56, v65")
    for jj in range(1, 8):
        A(f"v_fmac_f32 v48, s{56+jj}, v{64+4*jj}"); A(f"v_fmac_f32 v49, s{56+jj}, v{64+4*jj+1}")
    A("v_lshlrev_b32 v45, 3, v0")
    A(f"ds_write_b64 v45, v[48:49] offset:{L_O}")
    A("v_lshrrev_b32 v45, 3, v0")
    A("v_lshlrev_b32 v45, 6, v45")
    A("s_waitcnt lgkmcnt(0)")
    for q in range(4):
        A(f"ds_read_b128 v[{hXA+4*q}:{hXA+4*q+3}], v45 offset:{L_O+16*q}")
    A("s_waitcnt lgkmcnt(0)")
    for i in range(16):
        A(f"v_cvt_pk_bf16_f32 v{hXA+i}, v{hXA+i}, v{hXA+i}")
    for i in range(16):
        a = hA + 4 * (i & 1)
        for d in range(4):
            A(f"v_and_b32 v{a+d}, v{hXA+i}, v{hM+4+d}")
        A("s_nop 1")
        c = "0" if i == 0 else f"v[{hD}:{hD+3}]"
        A(f"v_mfma_f32_16x16x32_bf16 v[{hD}:{hD+3}], v[{a}:{a+3}], v[{hWO+4*i}:{hWO+4*i+3}], {c}")
    A("s_nop 7")
    for i in range(4):
        A(f"v_mov_b32 v{64+i}, v{hD+i}")
    A("s_nop 1")
    for i in range(4):
        A(f"v_permlane32_swap_b32 v{hD+i}, v{64+i}")
    A("s_nop 1")
    for i in range(4):
        A(f"v_add_f32_dpp v{hD+i}, v{64+i}, v{hD+i} row_ror:8 row_mask:0xf bank_mask:0xf")
    A("s_lshl_b32 s29, s21, 12")
    A("s_lshl_b32 s30, s22, 9")
    A("s_add_u32 s29, s29, s30")
    A(f"s_add_u32 s29, s29, {WS_P2}")
    A("s_mov_b32 exec_lo, -1")
    A(f"v_permlane32_swap_b32 v{hD}, v{hD+2}")
    A(f"v_permlane32_swap_b32 v{hD+1}, v{hD+3}")
    A(f"v_mov_b32 v50, v{hT}"); A(f"v_mov_b32 v51, v{hT+1}")
    A(f"v_mov_b32 v48, v{hD}"); A(f"v_mov_b32 v49, v{hD+1}")
    A("s_mov_b32 exec_lo, 0x00ff00ff")
    A("s_mov_b32 exec_hi, 0x00ff00ff")
    A("buffer_store_dwordx4 v[48:51], v6, s[12:15], s29 offen sc1")
    A("s_mov_b64 exec, -1")
    ST(6)
    A("s_and_b32 s29, s21, 7")
    A("s_cmp_lg_u32 s29, s22")
    A("s_cbranch_scc1 L_hend")
    A("v_lshrrev_b32 v45, 3, v0")
    A("v_lshlrev_b32 v45, 12, v45")
    A("v_and_b32 v46, 7, v0")
    A("v_lshl_add_u32 v45, v46, 4, v45")
    A("s_lshl_b32 s29, s21, 7")
    A(f"s_add_u32 s29, s29, {WS_P2}")
    def sloads():
        for k in range(4):
            A(f"s_add_u32 s33, s29, {k*8*4096}")
            A(f"buffer_load_dwordx4 v[{64+4*k}:{64+4*k+3}], v45, s[12:15], s33 offen sc1")
    poll("L_ps", sloads, [64 + 4 * k + 2 for k in range(4)])
    A("v_add_f32 v48, v64, v68"); A("v_add_f32 v49, v65, v69")
    for k in range(2, 4):
        A(f"v_add_f32 v48, v48, v{64+4*k}"); A(f"v_add_f32 v49, v49, v{64+4*k+1}")
    allreduce(A, "v_add_f32", 48, 44, rors=(8,))
    allreduce(A, "v_add_f32", 49, 44, rors=(8,))
    for (r, g, x) in ((48, 56, 58), (49, 57, 59)):
        rne_hi(A, r, r)
        A(f"v_mul_f32 v{r}, v{r}, v{g}")
        rne_hi(A, r, r)
        A(f"v_add_f32 v{r}, v{r}, v{x}")
    A("v_cvt_pk_bf16_f32 v48, v48, v49")
    A("s_mov_b32 s8, s50"); A("s_mov_b32 s9, s51"); A("s_mov_b32 s10, 1024"); A("s_mov_b32 s11, 0x20000")
    A("s_lshl_b32 s29, s21, 5")
    A("v_lshlrev_b32 v46, 2, v46")
    A("s_mov_b64 exec, 0xff")
    A("buffer_store_dword v48, v46, s[8:11], s29 offen")
    A("s_cmp_lg_u32 s21, 0")
    A("s_cbranch_scc1 L_hend")
    A("s_mov_b64 exec, 1")
    A(f"buffer_store_dwordx2 v[{hT}:{hT+1}], v36, s[12:15], 0 offen sc1")
    A.lab("L_hend")
    A("s_mov_b64 exec, -1")
    A("s_waitcnt vmcnt(0)")
    if stamp:
        stamp_out(A, 1)
    A.lab("L_end")
    A("s_endpgm")

    head = HDR + f"; @launch grid=(256,1,1) block=({NW*64},1,1) lds={LDS_BYTES}\n" + f""".amdgcn_target "amdgcn-amd-amdhsa--gfx950"
.text
.globl {NAME}_kernel
.p2align 8
.type {NAME}_kernel,@function
{NAME}_kernel:
"""
    foot = f""".section .rodata,"a"
.p2align 6
.amdhsa_kernel {NAME}_kernel
  .amdhsa_next_free_vgpr 256
  .amdhsa_next_free_sgpr 102
  .amdhsa_accum_offset 256
  .amdhsa_group_segment_fixed_size 0
  .amdhsa_kernarg_size 96
  .amdhsa_user_sgpr_count 2
  .amdhsa_user_sgpr_kernarg_segment_ptr 1
  .amdhsa_system_sgpr_workgroup_id_x 1
.end_amdhsa_kernel
"""
    return head + A.text() + foot

def stamp_out(A, helper):
    A("s_memrealtime s[84:85]")
    A("s_waitcnt lgkmcnt(0)")
    A("s_mul_i32 s29, s2, 5")
    A("s_add_u32 s29, s29, s20")
    A("s_lshl_b32 s29, s29, 5")
    A(f"s_add_u32 s29, s29, {WS_DBG}")
    for i in range(8):
        A(f"v_mov_b32 v{8+i}, s{70+2*i}")
    A("v_mov_b32 v16, s29")
    A("s_mov_b64 exec, 1")
    A("global_store_dwordx4 v16, v[8:11], s[24:25]")
    A("global_store_dwordx4 v16, v[12:15], s[24:25] offset:16")
    A("s_waitcnt vmcnt(0)")

if __name__ == "__main__":
    kw = eval("dict(" + (sys.argv[2] if len(sys.argv) > 2 else "") + ")")
    open(sys.argv[1], "w").write(gen(**kw))
```

```python
import sys, math, struct

NAME = "recurrent_scan__mha_block_cached__swiglu_ffn__decode"

HDR = """; Kernarg layout for this problem (96 bytes, ptrs only, base s[0:1]):
"""

def f2u(x):
    return struct.unpack("<I", struct.pack("<f", x))[0]

WS_EPOCH = 0x0
WS_TICK  = 0x1000
WS_QP    = 0x10000
WS_P1    = 0x80000
WS_P2    = 0x100000
WS_FP    = 0x140000
WS_DBG   = 0x180000
WS_SIZE  = 0x200000

L_XN = 0
L_Q  = 2048
L_PART = 2304
L_ML = 4352
L_H  = 4480
L_O  = 4608
L_TK = 5120
L_PROG = 5888
L_FT = 6144
L_W = 8192
W_RS = 144
LDS_BYTES = 8192 + 128 * 144

DEAD = 0x10000000
OOBV = 0x7FFFFFF0

SCALE = 128 ** -0.5
LOG2E = 1.4426950408889634
CSC = SCALE * LOG2E

class Em:
    def __init__(self):
        self.L = []
        self.vm = []
    def __call__(self, s):
        self.L.append(s)
    def lab(self, s):
        self.L.append(s + ":")
    def c(self, s):
        self.L.append("; " + s)
    def vmem(self, s, tag):
        self.L.append(s); self.vm.append(tag)
    def wait_tag(self, tag):
        idx = max(i for i, t in enumerate(self.vm) if t == tag)
        n = len(self.vm) - 1 - idx
        assert n <= 63, n
        self.L.append(f"s_waitcnt vmcnt({n})")
        return n
    def text(self):
        out = []
        for x in self.L:
            if x.endswith(":") or x.startswith(";"):
                out.append(x)
            else:
                out.append("    " + x)
        return "\n".join(out) + "\n"

def allreduce(A, op, v, t, rors=(8, 4, 2, 1), x16=True, x32=True):
    for r in rors:
        A("s_nop 1")
        A(f"{op}_dpp v{v}, v{v}, v{v} row_ror:{r} row_mask:0xf bank_mask:0xf")
    if x16:
        A(f"v_mov_b32 v{t}, v{v}")
        A("s_nop 1")
        A(f"v_permlane16_swap_b32 v{v}, v{t}")
        A(f"{op} v{v}, v{v}, v{t}")
    if x32:
        A(f"v_mov_b32 v{t}, v{v}")
        A("s_nop 1")
        A(f"v_permlane32_swap_b32 v{v}, v{t}")
        A(f"{op} v{v}, v{v}, v{t}")

def rne_hi(A, dst, src):
    A(f"v_cvt_pk_bf16_f32 v{dst}, v{src}, v{src}")
    A(f"v_and_b32 v{dst}, 0xffff0000, v{dst}")

def silu(A, dst, src, t):
    A(f"v_mul_f32 v{t}, {hex(f2u(-LOG2E))}, v{src}")
    A(f"v_exp_f32 v{t}, v{t}")
    A("s_nop 0")
    A(f"v_add_f32 v{t}, 1.0, v{t}")
    A(f"v_rcp_f32 v{t}, v{t}")
    A("s_nop 0")
    A(f"v_mul_f32 v{dst}, v{src}, v{t}")

def gen(R=6, F=2, NS=58, HELPER=0, POLL_LIMIT=400000, dbg=False, nt_w="nt", stamp=False, prio=True,
        ffn=1, ffn_nt="nt", ffn_comp=True, ffn_s1=True, ffn_s2=True, gsleep=8, gexp=False,
        LEAD=2, wq_on=True, wo_on=True, psleep=2, cheapq=False, E1=8, E2=8):
    A = Em()
    NW = 5
    WSTREAM = 32
    NI = 2048
    assert F == 2
    A("s_cmp_ge_u32 s2, 256")
    A("s_cbranch_scc1 L_end")
    A("v_lshrrev_b32 v1, 6, v0")
    A("v_and_b32 v0, 63, v0")
    A("s_load_dwordx2 s[24:25], s[0:1], 88")
    A("v_readfirstlane_b32 s20, v1")
    A("s_lshr_b32 s21, s2, 3")
    A("s_and_b32 s22, s2, 7")
    def ST(i):
        if stamp: A(f"s_memrealtime s[{70+2*i}:{71+2*i}]")
    if stamp:
        for i in range(8): A(f"s_mov_b32 s{70+2*i}, 0")
    ST(0)
    A(f"s_cmp_eq_u32 s20, {HELPER}")
    A("s_cbranch_scc1 L_helper")

    A("s_load_dwordx4 s[4:7], s[0:1], 8")
    if prio: A("s_setprio 1")
    if HELPER == 0:
        A("s_sub_u32 s23, s20, 1")
    else:
        A("s_mov_b32 s23, s20")
    vL = 0
    vKA, vVA, vCTR, vTICK = 2, 3, 4, 5
    vM = 6
    vO = 12
    vS = 16
    vm, vl = 10, 11
    vT, vU, vNM, vAL = 20, 21, 22, 23
    vP = 24
    vA = 28
    vQ = 44
    vRING = 64
    def kreg(k, u): return vRING + k * 32 + u * 4
    def vreg(k, u): return vRING + k * 32 + 16 + u * 4
    assert vRING + R * 32 <= 256
    sOFF = 40
    A("v_and_b32 v20, 15, v0")
    A("v_lshrrev_b32 v21, 4, v0")
    A("v_and_b32 v22, 3, v20")
    A("v_lshlrev_b32 v22, 2, v22")
    A("v_lshrrev_b32 v23, 2, v20")
    A("v_or_b32 v22, v22, v23")
    A("v_lshlrev_b32 v22, 8, v22")
    A(f"v_lshl_add_u32 v{vKA}, v21, 4, v22")
    A(f"v_lshlrev_b32 v{vVA}, 4, v0")
    A("v_and_b32 v22, 1, v20")
    A("v_mov_b32 v23, 0xffff")
    A("v_mov_b32 v24, 0xffff0000")
    A("v_cmp_eq_u32 vcc, 1, v22")
    A("v_lshrrev_b32 v25, 1, v20")
    A("s_nop 0")
    A("v_cndmask_b32 v23, v23, v24, vcc")
    for d in range(4):
        A(f"v_cmp_eq_u32 vcc, {d}, v25")
        A("s_nop 1")
        A(f"v_cndmask_b32 v{vM+d}, 0, v23, vcc")
    A(f"v_mov_b32 v{vm}, 0xff800000")
    A(f"v_mov_b32 v{vl}, 0")
    for i in range(4): A(f"v_mov_b32 v{vO+i}, 0")
    A(f"s_mov_b32 s30, {hex(f2u(CSC))}")
    A(f"s_mov_b32 s31, {hex(f2u(-CSC))}")
    A("s_lshl_b32 s26, s21, 23")
    A("s_lshl_b32 s27, s22, 2")
    A("s_add_u32 s27, s27, s23")
    A("s_waitcnt lgkmcnt(0)")
    A("s_mov_b32 s8, s4"); A("s_mov_b32 s9, s5"); A(f"s_mov_b32 s10, {hex(DEAD)}"); A("s_mov_b32 s11, 0x20000")
    A("s_mov_b32 s12, s6"); A("s_mov_b32 s13, s7"); A(f"s_mov_b32 s14, {hex(DEAD)}"); A("s_mov_b32 s15, 0x20000")
    if dbg:
        A("s_mov_b32 s16, s24"); A("s_mov_b32 s17, s25"); A("s_mov_b32 s18, 0"); A("s_mov_b32 s19, 0x20000")
    A("s_barrier")

    def static_off(n):
        k = n % R
        A(f"s_add_u32 s29, s27, {32*n}")
        A("s_lshl_b32 s29, s29, 12")
        A(f"s_add_u32 s{sOFF+k}, s29, s26")
    def issueK(n):
        k = n % R
        for u in range(4):
            r = kreg(k, u)
            A.vmem(f"buffer_load_dwordx4 v[{r}:{r+3}], v{vKA}, s[8:11], s{sOFF+k} offen offset:{u*64} nt", ("K", n))
    def issueV(n):
        k = n % R
        for u in range(4):
            r = vreg(k, u)
            A.vmem(f"buffer_load_dwordx4 v[{r}:{r+3}], v{vVA}, s[12:15], s{sOFF+k} offen offset:{u*1024} nt", ("V", n))
    def qk_mfma(n):
        k = n % R
        for u in range(4):
            r = kreg(k, u)
            c = "0" if u == 0 else f"v[{vS}:{vS+3}]"
            A(f"v_mfma_f32_16x16x32_bf16 v[{vS}:{vS+3}], v[{r}:{r+3}], v[{vQ+4*u}:{vQ+4*u+3}], {c}")
    def softmax(n, pad):
        if pad > 0: A(f"s_nop {pad-1}")
        A(f"v_max3_f32 v{vT}, v{vS}, v{vS+1}, v{vS+2}")
        A(f"v_max_f32 v{vT}, v{vT}, v{vS+3}")
        A(f"v_mov_b32 v{vU}, v{vT}")
        A("s_nop 1")
        A(f"v_permlane16_swap_b32 v{vT}, v{vU}")
        A(f"v_max_f32 v{vT}, v{vT}, v{vU}")
        A(f"v_mov_b32 v{vU}, v{vT}")
        A("s_nop 1")
        A(f"v_permlane32_swap_b32 v{vT}, v{vU}")
        A(f"v_max3_f32 v{vT}, v{vT}, v{vU}, v{vm}")
        A(f"v_mul_f32 v{vNM}, s31, v{vT}")
        A(f"v_fma_f32 v{vAL}, v{vm}, s30, v{vNM}")
        for i in range(4):
            A(f"v_fma_f32 v{vP+i}, v{vS+i}, s30, v{vNM}")
        A(f"v_exp_f32 v{vAL}, v{vAL}")
        for i in range(4):
            A(f"v_exp_f32 v{vP+i}, v{vP+i}")
        A(f"v_mov_b32 v{vm}, v{vT}")
        for i in range(4):
            A(f"v_mul_f32 v{vO+i}, v{vO+i}, v{vAL}")
        A(f"v_add_f32 v{vT}, v{vP}, v{vP+1}")
        A(f"v_add_f32 v{vU}, v{vP+2}, v{vP+3}")
        for i in range(4):
            A(f"v_cvt_pk_bf16_f32 v{vP+i}, v{vP+i}, v{vP+i}")
        A(f"v_add_f32 v{vT}, v{vT}, v{vU}")
        A(f"v_fma_f32 v{vl}, v{vl}, v{vAL}, v{vT}")
        for i in range(4):
            for d in range(4):
                A(f"v_and_b32 v{vA+4*i+d}, v{vP+i}, v{vM+d}")
    def pv_mfma(n):
        k = n % R
        for u in range(4):
            r = vreg(k, u)
            A(f"v_mfma_f32_16x16x32_bf16 v[{vO}:{vO+3}], v[{vA+4*u}:{vA+4*u+3}], v[{r}:{r+3}], v[{vO}:{vO+3}]")

    units = []
    def issue_unit(u):
        n = u // 2
        if u % 2 == 0:
            static_off(n); issueK(n)
        else:
            issueV(n)
    def land_unit(u):
        A.wait_tag(("K" if u % 2 == 0 else "V", u // 2))
    for u in range(F): issue_unit(u)
    for u in range(2 * R - F):
        land_unit(u); issue_unit(u + F)
    ST(1)
    A("s_barrier")
    ST(2)
    A("v_lshrrev_b32 v20, 4, v0")
    A("v_lshlrev_b32 v20, 4, v20")
    for s in range(4):
        A(f"ds_read_b128 v[{vQ+4*s}:{vQ+4*s+3}], v20 offset:{L_Q + s*64}")
    A("s_waitcnt lgkmcnt(0)")
    P = 0; I = 2 * R; Ld = 2 * R - F
    def proc_unit(u):
        n = u // 2
        if u % 2 == 0:
            qk_mfma(n); softmax(n, 8)
        else:
            A("s_nop 1")
            pv_mfma(n)
    state_ok = lambda: (P == Ld and P % 2 == 0 and I == P + F)
    steps = 0
    while not state_ok():
        steps += 1
        assert steps < 100
        while P <= I - 2 * R:
            proc_unit(P); P += 1
        if I - Ld < F or True:
            land_unit(Ld); Ld += 1
            issue_unit(I); I += 1
        k = 0
        while P < Ld and k < 2:
            proc_unit(P); P += 1; k += 1
        if P == Ld and P % 2 == 1:
            land_unit(Ld); Ld += 1
            issue_unit(I); I += 1
            proc_unit(P); P += 1
    n0 = P // 2
    assert I == 2 * n0 + 2
    A.c(f"catch-up done: loop starts at item {n0}, slot {n0 % R}")
    ST(3)
    assert n0 + 2 <= NS
    POOL = NI - 32 * NS
    vTKD = 60
    A(f"s_add_u32 s27, s27, {32*(n0+1)}")
    A(f"s_mov_b32 s28, {n0+1}")
    A(f"v_mov_b32 v{vCTR}, {L_TK - 4*(NS - (n0+2))}")
    A(f"v_mov_b32 v{vTICK}, {n0+1}")
    A("s_lshl_b32 s29, s23, 2")
    A(f"s_add_u32 s29, s29, {L_PROG}")
    A("v_mov_b32 v1, s29")
    A(f"s_add_u32 s35, s23, {32*NS}")
    if dbg:
        A("s_mov_b32 s60, 0"); A("s_mov_b32 s61, 0")
    A.lab("L_loop")
    spins = []
    for kk in range(R):
        n = n0 + kk
        k = n % R; k2 = (n + 1) % R
        A.c(f"--- item slot {k}")
        A(f"s_cmp_ge_u32 s{sOFF+k}, {hex(DEAD)}")
        A("s_cbranch_scc1 L_fin")
        A(f"s_cmp_lt_u32 s28, {NS}")
        A(f"s_cbranch_scc1 L_stat{kk}")
        A("s_waitcnt lgkmcnt(0)")
        A(f"v_readfirstlane_b32 s29, v{vTKD}")
        A("s_cmp_eq_u32 s29, -1")
        A(f"s_cbranch_scc1 L_spin{kk}")
        A.lab(f"L_back{kk}")
        A("s_add_u32 s27, s29, s35")
        A.lab(f"L_stat{kk}")
        A("s_lshl_b32 s33, s27, 12")
        A("s_add_u32 s33, s33, s26")
        A(f"s_cmp_lt_u32 s27, {NI}")
        A(f"s_cselect_b32 s{sOFF+k2}, s33, {hex(DEAD)}")
        if dbg:
            A("s_cselect_b32 s62, s27, 0")
            A("s_cselect_b32 s63, 1, 0")
            A("s_add_u32 s60, s60, s62")
            A("s_add_u32 s61, s61, s63")
        A("s_add_u32 s27, s27, 32")
        A("s_add_u32 s28, s28, 1")
        A("s_waitcnt vmcnt(4)")
        for u in range(4):
            r = kreg(k2, u)
            A(f"buffer_load_dwordx4 v[{r}:{r+3}], v{vKA}, s[8:11], s{sOFF+k2} offen offset:{u*64} nt")
        A(f"ds_write_b32 v1, v{vTICK}")
        A(f"ds_read_b32 v{vTKD}, v{vCTR}")
        qk_mfma(n)
        A(f"v_add_u32 v{vTICK}, 1, v{vTICK}")
        A(f"v_add_u32 v{vCTR}, 4, v{vCTR}")
        softmax(n, 6)
        A("s_waitcnt vmcnt(4)")
        for u in range(4):
            r = vreg(k2, u)
            A(f"buffer_load_dwordx4 v[{r}:{r+3}], v{vVA}, s[12:15], s{sOFF+k2} offen offset:{u*1024} nt")
        pv_mfma(n)
        spins.append(kk)
    A("s_branch L_loop")
    for kk in spins:
        A.lab(f"L_spin{kk}")
        A(f"s_mov_b32 s34, {POLL_LIMIT}")
        A(f"v_add_u32 v{vT}, -4, v{vCTR}")
        A.lab(f"L_spin{kk}_l")
        A(f"ds_read_b32 v{vTKD}, v{vT}")
        A("s_waitcnt lgkmcnt(0)")
        A(f"v_readfirstlane_b32 s29, v{vTKD}")
        A("s_cmp_lg_u32 s29, -1")
        A(f"s_cbranch_scc1 L_back{kk}")
        A("s_sleep 1")
        A("s_sub_u32 s34, s34, 1")
        A("s_cmp_lg_u32 s34, 0")
        A(f"s_cbranch_scc1 L_spin{kk}_l")
        A(f"s_mov_b32 s29, {POOL}")
        A(f"s_branch L_back{kk}")
    A.lab("L_fin")
    A("s_nop 7")
    A("v_lshrrev_b32 v20, 4, v0")
    A("v_and_b32 v21, 15, v0")
    A("s_lshl_b32 s29, s23, 5")
    A(f"s_add_u32 s29, s29, {L_ML}")
    A("v_lshlrev_b32 v22, 2, v20")
    A("v_add_u32 v22, s29, v22")
    A(f"ds_write_b32 v22, v{vl}")
    A("v_mov_b32 v22, s29")
    A(f"ds_write_b32 v22, v{vm} offset:16")
    A("s_lshl_b32 s29, s23, 9")
    A(f"s_add_u32 s29, s29, {L_PART}")
    A("v_lshlrev_b32 v22, 5, v21")
    A("v_lshl_add_u32 v22, v20, 4, v22")
    A("v_add_u32 v22, s29, v22")
    A("s_mov_b32 exec_hi, 0")
    A(f"ds_write_b128 v22, v[{vO}:{vO+3}]")
    A("s_mov_b32 exec_hi, -1")
    ST(4)
    A("s_waitcnt lgkmcnt(0)")
    A("s_barrier")
    ST(5)
    A("s_waitcnt vmcnt(0)")
    if dbg:
        A("s_lshl_b32 s29, s2, 2")
        A("s_add_u32 s29, s29, s23")
        A("s_lshl_b32 s29, s29, 3")
        A(f"s_add_u32 s29, s29, {WS_DBG + 0x10000}")
        A("v_mov_b32 v8, s60"); A("v_mov_b32 v9, s61"); A("v_mov_b32 v12, 0")
        A(f"s_mov_b32 s18, {hex(WS_SIZE)}")
        A("s_mov_b64 exec, 1")
        A("buffer_store_dwordx2 v[8:9], v12, s[16:19], s29 offen")
        A("s_waitcnt vmcnt(0)")
    if stamp:
        stamp_out(A, 0)
    A("s_endpgm")

    A.lab("L_helper")
    A.vm = []
    A("s_load_dwordx2 s[4:5], s[0:1], 0")
    A("s_load_dwordx4 s[36:39], s[0:1], 24")
    A("s_load_dwordx4 s[44:47], s[0:1], 48")
    A("s_load_dwordx4 s[48:51], s[0:1], 64")
    if prio: A("s_setprio 3")
    hE = 2
    hT = 4
    hX = 8
    hF = 12
    hW = 64
    hM = 20
    hD = 28
    A("v_and_b32 v32, 15, v0")
    A("v_lshrrev_b32 v33, 4, v0")
    A("s_lshl_b32 s29, s22, 19")
    A("s_lshl_b32 s30, s21, 8")
    A("s_add_u32 s29, s29, s30")
    A("v_lshlrev_b32 v34, 17, v33")
    A("v_lshl_add_u32 v34, v32, 4, v34")
    A("v_add_u32 v34, s29, v34")
    A("v_lshlrev_b32 v35, 4, v0")
    A("v_mov_b32 v36, 0")
    A("s_waitcnt lgkmcnt(0)")
    A("s_mov_b32 s12, s24"); A("s_mov_b32 s13, s25"); A(f"s_mov_b32 s14, {hex(WS_SIZE)}"); A("s_mov_b32 s15, 0x20000")
    A("s_mov_b32 s8, s4"); A("s_mov_b32 s9, s5"); A("s_mov_b32 s10, 1024"); A("s_mov_b32 s11, 0x20000")
    A("s_mov_b32 s16, s36"); A("s_mov_b32 s17, s37"); A(f"s_mov_b32 s18, {512*8192}"); A("s_mov_b32 s19, 0x20000")
    A.vmem(f"buffer_load_dwordx4 v[{hX}:{hX+3}], v35, s[8:11], 0 offen", "x")
    A.vmem(f"buffer_load_dwordx2 v[{hE}:{hE+1}], v36, s[12:15], 0 offen sc1", "E")
    for i in range(16):
        A(f"s_mov_b32 s29, {i*8192}")
        if wq_on or i == 0: A.vmem(f"buffer_load_dwordx4 v[{hW+4*i}:{hW+4*i+3}], v34, s[16:19], s29 offen {nt_w}", "wq")
    A("s_barrier")
    A("s_cmp_lg_u32 s22, 0")
    A("s_cbranch_scc1 L_nozero")
    A("s_lshl_b32 s29, s21, 7")
    A(f"s_add_u32 s29, s29, {WS_TICK}")
    A("s_mov_b64 exec, 1")
    A("buffer_store_dword v36, v36, s[12:15], s29 offen sc1")
    A("s_mov_b64 exec, -1")
    A.lab("L_nozero")
    A("v_lshlrev_b32 v37, 2, v0")
    A("v_mov_b32 v38, -1")
    for q in range(3):
        A(f"ds_write_b32 v37, v38 offset:{L_TK + 256*q}")
    A(f"ds_write_b32 v37, v36 offset:{L_PROG}")
    A("v_and_b32 v37, 1, v32")
    A("v_mov_b32 v38, 0xffff")
    A("v_mov_b32 v39, 0xffff0000")
    A("v_cmp_eq_u32 vcc, 1, v37")
    A("v_lshrrev_b32 v40, 1, v32")
    A("v_and_b32 v41, 3, v40")
    A("v_cndmask_b32 v38, v38, v39, vcc")
    for d in range(4):
        A(f"v_cmp_eq_u32 vcc, {d}, v40")
        A("s_nop 1")
        A(f"v_cndmask_b32 v{hM+d}, 0, v38, vcc")
        A(f"v_cmp_eq_u32 vcc, {d}, v41")
        A("s_nop 1")
        A(f"v_cndmask_b32 v{hM+4+d}, 0, v38, vcc")
    ST(1)
    A(f"s_waitcnt vmcnt({16 if wq_on else 1})")
    for q in range(4):
        A(f"v_lshlrev_b32 v{hF+2*q}, 16, v{hX+q}")
        A(f"v_and_b32 v{hF+2*q+1}, 0xffff0000, v{hX+q}")
    A(f"v_add_co_u32 v{hT}, vcc, 1, v{hE}")
    A("s_nop 1")
    A(f"v_addc_co_u32 v{hT+1}, vcc, 0, v{hE+1}, vcc")
    A(f"v_add_f32 v42, v{hF}, v{hF+1}")
    for q in range(2, 8):
        A(f"v_add_f32 v42, v42, v{hF+q}")
    allreduce(A, "v_add_f32", 42, 43)
    A(f"v_mul_f32 v42, {hex(f2u(1/512))}, v42")
    A(f"v_sub_f32 v44, v{hF}, v42")
    A("v_mul_f32 v45, v44, v44")
    for q in range(1, 8):
        A(f"v_sub_f32 v44, v{hF+q}, v42")
        A("v_fmac_f32 v45, v44, v44")
    allreduce(A, "v_add_f32", 45, 43)
    A(f"v_mul_f32 v45, {hex(f2u(1/512))}, v45")
    rne_hi(A, 42, 42)
    rne_hi(A, 45, 45)
    A(f"v_add_f32 v45, {hex(f2u(1e-5))}, v45")
    rne_hi(A, 45, 45)
    A("v_sqrt_f32 v45, v45")
    A("s_nop 0")
    rne_hi(A, 45, 45)
    A("v_rcp_f32 v46, v45")
    for q in range(8):
        A(f"v_sub_f32 v{hF+q}, v{hF+q}, v42")
        rne_hi(A, hF + q, hF + q)
        A(f"v_mul_f32 v44, v{hF+q}, v46")
        A(f"v_fma_f32 v47, -v44, v45, v{hF+q}")
        A(f"v_fma_f32 v44, v47, v46, v44")
        rne_hi(A, hF + q, 44)
    A("v_lshlrev_b32 v44, 5, v0")
    A(f"ds_write_b128 v44, v[{hF}:{hF+3}] offset:{L_XN}")
    A(f"ds_write_b128 v44, v[{hF+4}:{hF+7}] offset:{L_XN+16}")
    A("s_lshl_b32 s29, s22, 8")
    A("v_lshlrev_b32 v44, 6, v33")
    A("v_add_u32 v44, s29, v44")
    A("s_waitcnt lgkmcnt(0)")
    hXA = 128
    for q in range(4):
        A(f"ds_read_b128 v[{hXA+4*q}:{hXA+4*q+3}], v44 offset:{L_XN+16*q}")
    A("s_waitcnt lgkmcnt(0)")
    for i in range(16):
        A(f"v_cvt_pk_bf16_f32 v{hXA+i}, v{hXA+i}, v{hXA+i}")
    A("s_waitcnt vmcnt(0)")
    ST(2)
    hA = 144
    for i in range(16):
        a = hA + 4 * (i & 1)
        for d in range(4):
            A(f"v_and_b32 v{a+d}, v{hXA+i}, v{hM+d}")
        A("s_nop 1")
        c = "0" if i == 0 else f"v[{hD}:{hD+3}]"
        A(f"v_mfma_f32_16x16x32_bf16 v[{hD}:{hD+3}], v[{a}:{a+3}], v[{hW+4*i}:{hW+4*i+3}], {c}")
    A("s_lshl_b32 s29, s2, 10")
    A(f"s_add_u32 s29, s29, {WS_QP}")
    A("v_and_b32 v44, 1, v33")
    A("v_lshlrev_b32 v44, 5, v44")
    A("v_lshrrev_b32 v45, 1, v33")
    A("v_lshl_add_u32 v44, v45, 4, v44")
    A("v_lshl_add_u32 v6, v32, 6, v44")
    A("s_nop 3")
    def publish1(dreg, vaddr, soff):
        A(f"v_permlane32_swap_b32 v{dreg}, v{dreg+2}")
        A(f"v_permlane32_swap_b32 v{dreg+1}, v{dreg+3}")
        A(f"v_mov_b32 v50, v{hT}"); A(f"v_mov_b32 v51, v{hT+1}")
        A(f"v_mov_b32 v48, v{dreg}"); A(f"v_mov_b32 v49, v{dreg+1}")
        A(f"buffer_store_dwordx4 v[48:51], v{vaddr}, s[12:15], {soff} offen sc1")
    publish1(hD, 6, "s29")
    def poll(label, loads, nregs_tagpairs, extra_ok=None, sleep=0):
        A(f"s_mov_b32 s34, {POLL_LIMIT}")
        A.lab(label)
        loads()
        A("s_waitcnt vmcnt(0)")
        A("s_mov_b64 s[30:31], -1")
        for idx, tp in enumerate(nregs_tagpairs):
            A(f"v_cmp_eq_u64 vcc, v[{tp}:{tp+1}], v[{hT}:{hT+1}]")
            if extra_ok and idx in extra_ok:
                A(f"s_or_b64 vcc, vcc, {extra_ok[idx]}")
            A("s_and_b64 s[30:31], s[30:31], vcc")
        A("s_cmp_eq_u64 s[30:31], -1")
        A(f"s_cbranch_scc1 {label}_ok")
        if sleep: A(f"s_sleep {sleep}")
        A("s_sub_u32 s34, s34, 1")
        A("s_cmp_lg_u32 s34, 0")
        A(f"s_cbranch_scc1 {label}")
        A.lab(label + "_ok")
    hG = 64
    A("s_lshl_b32 s29, s21, 13")
    A(f"s_add_u32 s29, s29, {WS_QP}")
    def qloads():
        for jj in range(8):
            A(f"s_add_u32 s33, s29, {jj*1024}")
            A(f"buffer_load_dwordx4 v[{hG+4*jj}:{hG+4*jj+3}], v35, s[12:15], s33 offen sc1")
    if cheapq:
        A("v_lshlrev_b32 v45, 10, v0")
        A("v_add_u32 v45, 1008, v45")
        A(f"v_mov_b32 v46, {hex(OOBV)}")
        A("v_cmp_gt_u32 vcc, 8, v0")
        A("s_nop 1")
        A("v_cndmask_b32 v45, v46, v45, vcc")
        A("s_mov_b32 s52, 0xffffff00"); A("s_mov_b32 s53, -1")
        def qpre():
            A(f"buffer_load_dwordx4 v[{hG}:{hG+3}], v45, s[12:15], s29 offen sc1")
        poll("L_pq0", qpre, [hG + 2], extra_ok={0: "s[52:53]"}, sleep=psleep)
    poll("L_pq", qloads, [hG + 4 * jj + 2 for jj in range(8)])
    A(f"v_add_f32 v44, v{hG}, v{hG+4}")
    A(f"v_add_f32 v45, v{hG+1}, v{hG+5}")
    for jj in range(2, 8):
        A(f"v_add_f32 v44, v44, v{hG+4*jj}")
        A(f"v_add_f32 v45, v45, v{hG+4*jj+1}")
    A("v_cvt_pk_bf16_f32 v44, v44, v45")
    A("v_lshlrev_b32 v45, 2, v0")
    A(f"ds_write_b32 v45, v44 offset:{L_Q}")
    A("s_waitcnt lgkmcnt(0)")
    ST(3)
    A("s_barrier")
    if prio: A("s_setprio 0")

    for w in range(256):
        assert (w * 171) >> 10 == w // 6
    A("s_mul_i32 s29, s2, 171")
    A("s_lshr_b32 s29, s29, 10")
    A("s_mul_i32 s30, s29, 6")
    A("s_cmp_lg_u32 s30, s2")
    A("s_cbranch_scc1 L_noffn")
    if not ffn: A("s_branch L_noffn")
    A("s_mov_b32 s35, s29")
    A("s_mov_b32 s8, s44"); A("s_mov_b32 s9, s45"); A(f"s_mov_b32 s10, {512*2752}"); A("s_mov_b32 s11, 0x20000")
    A("s_mov_b32 s16, s46"); A("s_mov_b32 s17, s47"); A(f"s_mov_b32 s18, {512*2752}"); A("s_mov_b32 s19, 0x20000")
    A("v_lshrrev_b32 v44, 2, v0")
    A("v_and_b32 v45, 3, v0")
    A(f"s_mov_b32 s30, {32*2752}")
    A("v_mul_lo_u32 v46, v44, s30")
    A("v_lshl_add_u32 v46, v45, 4, v46")
    A("s_lshl_b32 s30, s35, 6")
    A("v_add_u32 v46, s30, v46")
    A("v_lshlrev_b32 v47, 7, v44")
    hAG = 12
    hAU = 56
    for q in range(8):
        A(f"v_mov_b32 v{hAG+q}, 0"); A(f"v_mov_b32 v{hAU+q}, 0")
    A("s_mov_b32 s31, 0")
    A("s_mov_b32 s32, 4")
    A.lab("L_f1")
    for i in range(8):
        A(f"s_add_u32 s33, s31, {i*2752}")
        if ffn_s1:
            A(f"buffer_load_dwordx4 v[{64+4*i}:{64+4*i+3}], v46, s[8:11], s33 offen {ffn_nt}")
            A(f"buffer_load_dwordx4 v[{96+4*i}:{96+4*i+3}], v46, s[16:19], s33 offen {ffn_nt}")
    A(f"ds_read_b128 v[128:131], v47 offset:{L_XN}")
    A(f"ds_read_b128 v[132:135], v47 offset:{L_XN+16}")
    A("v_add_u32 v47, 32, v47")
    A(f"s_add_u32 s31, s31, {8*2752}")
    A("s_waitcnt vmcnt(0) lgkmcnt(0)")
    for i in range(8 if ffn_comp else 0):
        for (base, acc) in ((64, hAG), (96, hAU)):
            for q in range(4):
                r = base + 4 * i + q
                A(f"v_lshlrev_b32 v44, 16, v{r}")
                A(f"v_and_b32 v45, 0xffff0000, v{r}")
                A(f"v_fmac_f32 v{acc+2*q}, v44, v{128+i}")
                A(f"v_fmac_f32 v{acc+2*q+1}, v45, v{128+i}")
    A("s_sub_u32 s32, s32, 1")
    A("s_cmp_lg_u32 s32, 0")
    A("s_cbranch_scc1 L_f1")
    for q in range(8):
        allreduce(A, "v_add_f32", hAG + q, 44, rors=(4, 8))
        allreduce(A, "v_add_f32", hAU + q, 44, rors=(4, 8))
    for q in range(8):
        rne_hi(A, hAG + q, hAG + q)
        silu(A, hAG + q, hAG + q, 44)
        rne_hi(A, hAG + q, hAG + q)
        rne_hi(A, hAU + q, hAU + q)
        A(f"v_mul_f32 v{hAG+q}, v{hAG+q}, v{hAU+q}")
        rne_hi(A, hAG + q, hAG + q)
    A("v_and_b32 v45, 3, v0")
    A("v_lshlrev_b32 v45, 5, v45")
    A("s_mov_b64 exec, 15")
    A(f"ds_write_b128 v45, v[{hAG}:{hAG+3}] offset:{L_H}")
    A(f"ds_write_b128 v45, v[{hAG+4}:{hAG+7}] offset:{L_H+16}")
    A("s_mov_b64 exec, -1")
    A("s_mov_b32 s8, s48"); A("s_mov_b32 s9, s49"); A(f"s_mov_b32 s10, {1376*1024}"); A("s_mov_b32 s11, 0x20000")
    A("s_lshl_b32 s31, s35, 15")
    A(f"v_mov_b32 v47, {L_H}")
    for q in range(8): A(f"v_mov_b32 v{hAU+q}, 0")
    A("s_mov_b32 s32, 4")
    A("s_waitcnt lgkmcnt(0)")
    A.lab("L_f2")
    for i in range(8):
        A(f"s_add_u32 s33, s31, {i*1024}")
        if ffn_s2: A(f"buffer_load_dwordx4 v[{64+4*i}:{64+4*i+3}], v35, s[8:11], s33 offen {ffn_nt}")
    A("ds_read_b128 v[128:131], v47")
    A("ds_read_b128 v[132:135], v47 offset:16")
    A("v_add_u32 v47, 32, v47")
    A(f"s_add_u32 s31, s31, {8*1024}")
    A("s_waitcnt vmcnt(0) lgkmcnt(0)")
    for i in range(8 if ffn_comp else 0):
        for q in range(4):
            r = 64 + 4 * i + q
            A(f"v_lshlrev_b32 v44, 16, v{r}")
            A(f"v_and_b32 v45, 0xffff0000, v{r}")
            A(f"v_fmac_f32 v{hAU+2*q}, v44, v{128+i}")
            A(f"v_fmac_f32 v{hAU+2*q+1}, v45, v{128+i}")
    A("s_sub_u32 s32, s32, 1")
    A("s_cmp_lg_u32 s32, 0")
    A("s_cbranch_scc1 L_f2")
    A("v_lshlrev_b32 v44, 5, v0")
    A(f"ds_write_b128 v44, v[{hAU}:{hAU+3}] offset:{L_FT}")
    A(f"ds_write_b128 v44, v[{hAU+4}:{hAU+7}] offset:{L_FT+16}")
    A("v_lshlrev_b32 v44, 3, v0")
    A("s_waitcnt lgkmcnt(0)")
    for q in range(4):
        A(f"ds_read_b64 v[{64+4*q}:{64+4*q+1}], v44 offset:{L_FT + 512*q}")
        A(f"v_mov_b32 v{64+4*q+2}, v{hT}"); A(f"v_mov_b32 v{64+4*q+3}, v{hT+1}")
    A("s_lshl_b32 s29, s35, 12")
    A(f"s_add_u32 s29, s29, {WS_FP}")
    A("s_waitcnt lgkmcnt(0)")
    for q in range(4):
        A(f"buffer_store_dwordx4 v[{64+4*q}:{64+4*q+3}], v35, s[12:15], s29 offen offset:{1024*q} sc1")
    A.lab("L_noffn")

    A("s_mov_b32 s16, s38"); A("s_mov_b32 s17, s39"); A(f"s_mov_b32 s18, {4096*1024}"); A("s_mov_b32 s19, 0x20000")
    hWO = 160
    A("v_lshrrev_b32 v44, 3, v0")
    A("v_lshlrev_b32 v44, 14, v44")
    A("v_and_b32 v45, 7, v0")
    A("v_lshl_add_u32 v44, v45, 4, v44")
    A("s_lshl_b32 s29, s21, 17")
    A("s_lshl_b32 s30, s22, 7")
    A("s_add_u32 s29, s29, s30")
    for i in range(16):
        A(f"s_add_u32 s33, s29, {i*1024}")
        if wo_on: A(f"buffer_load_dwordx4 v[{hWO+4*i}:{hWO+4*i+3}], v44, s[16:19], s33 offen {nt_w}")
    A("v_lshrrev_b32 v44, 3, v0")
    A(f"v_mul_u32_u24 v44, {16*W_RS}, v44")
    A("v_and_b32 v45, 7, v0")
    A("v_lshl_add_u32 v44, v45, 4, v44")
    A("s_waitcnt vmcnt(0)")
    for i in range(16):
        A(f"ds_write_b128 v44, v[{hWO+4*i}:{hWO+4*i+3}] offset:{L_W + i*W_RS}")
        if i % 8 == 7: A("s_waitcnt lgkmcnt(0)")
    A(f"v_mul_u32_u24 v44, {8*W_RS}, v33")
    A("v_lshl_add_u32 v44, v32, 1, v44")
    for cg in range(4):
        for sx in range(4):
            for e in range(8):
                A(f"ds_read_u16 v{64+e}, v44 offset:{L_W + (32*sx + e)*W_RS + 32*cg}")
            A("s_waitcnt lgkmcnt(0)")
            for d in range(4):
                A(f"v_lshl_or_b32 v{hWO + 16*cg + 4*sx + d}, v{64+2*d+1}, 16, v{64+2*d}")

    A("s_lshl_b32 s29, s21, 7")
    A(f"s_add_u32 s29, s29, {WS_TICK}")
    A("v_mov_b32 v44, s29")
    A(f"v_mov_b32 v45, {hex(OOBV)}")
    A("v_cmp_eq_u32 vcc, 0, v0")
    A(f"v_mov_b32 v46, {L_PROG}")
    A(f"v_mov_b32 v47, {L_TK}")
    A("v_cndmask_b32 v44, v45, v44, vcc")
    A(f"s_mov_b32 s36, {NS - LEAD}")
    A("s_mov_b32 s37, 0")
    A.lab("L_tk")
    A(f"s_mov_b32 s34, {POLL_LIMIT}")
    A.lab("L_tkw")
    A("ds_read_b128 v[64:67], v46")
    A("s_waitcnt lgkmcnt(0)")
    A("v_max3_u32 v64, v64, v65, v66")
    A("v_max_u32 v64, v64, v67")
    A("s_nop 0")
    A("v_readfirstlane_b32 s29, v64")
    A("s_cmp_ge_u32 s29, s36")
    A("s_cbranch_scc1 L_tkgo")
    A(f"s_sleep {psleep}")
    A("s_sub_u32 s34, s34, 1")
    A("s_cmp_lg_u32 s34, 0")
    A("s_cbranch_scc1 L_tkw")
    A.lab("L_tkgo")
    A("v_mov_b32 v65, 4")
    A("buffer_atomic_add v65, v44, s[12:15], 0 offen sc0 sc1")
    A("s_waitcnt vmcnt(0)")
    A("v_readfirstlane_b32 s29, v65")
    A("s_cmp_lt_u32 s37, 180")
    A(f"s_cselect_b32 s29, s29, {NI - 32*NS}")
    A("v_mov_b32 v65, s29")
    A("ds_write_b32 v47, v65")
    A("v_add_u32 v47, 4, v47")
    A("s_add_u32 s36, s36, 1")
    A("s_add_u32 s37, s37, 1")
    A(f"s_cmp_lt_u32 s29, {NI - 32*NS}")
    A("s_cbranch_scc1 L_tk")

    A("s_and_b32 s29, s21, 7")
    A("s_cmp_lg_u32 s29, s22")
    A("s_cbranch_scc1 L_nocons1")
    hGG = 56
    A("v_lshrrev_b32 v45, 3, v0")
    A("v_lshlrev_b32 v45, 12, v45")
    A("v_and_b32 v46, 7, v0")
    A("v_lshl_add_u32 v45, v46, 4, v45")
    A("s_lshl_b32 s29, s21, 7")
    A(f"s_add_u32 s29, s29, {WS_FP}")
    A(f"v_mov_b32 v47, {hex(OOBV)}")
    A("v_cmp_gt_u32 vcc, 24, v0")
    A("s_nop 1")
    A("v_cndmask_b32 v47, v47, v45, vcc")
    A("s_mov_b32 s52, 0xff000000"); A("s_mov_b32 s53, -1")
    def floads():
        for k in range(6):
            A(f"s_add_u32 s33, s29, {k*8*4096}")
            va = 47 if k == 5 else 45
            A(f"buffer_load_dwordx4 v[{64+4*k}:{64+4*k+3}], v{va}, s[12:15], s33 offen sc1")
    if ffn and not gexp:
        poll("L_pf", floads, [64 + 4 * k + 2 for k in range(6)], extra_ok={5: "s[52:53]"}, sleep=gsleep)
    A("v_add_f32 v56, v64, v68"); A("v_add_f32 v57, v65, v69")
    for k in range(2, 6):
        A(f"v_add_f32 v56, v56, v{64+4*k}"); A(f"v_add_f32 v57, v57, v{64+4*k+1}")
    allreduce(A, "v_add_f32", 56, 44, rors=(8,))
    allreduce(A, "v_add_f32", 57, 44, rors=(8,))
    for r in (56, 57):
        rne_hi(A, r, r)
        silu(A, r, r, 44)
        rne_hi(A, r, r)
    A("s_mov_b32 s8, s4"); A("s_mov_b32 s9, s5"); A("s_mov_b32 s10, 1024"); A("s_mov_b32 s11, 0x20000")
    A("s_lshl_b32 s29, s21, 5")
    A("v_lshlrev_b32 v46, 2, v46")
    A("buffer_load_dword v58, v46, s[8:11], s29 offen")
    A("s_waitcnt vmcnt(0)")
    A("v_and_b32 v59, 0xffff0000, v58")
    A("v_lshlrev_b32 v58, 16, v58")
    A.lab("L_nocons1")

    def engine(label, nitems, nslots, slot0, vaddr, sbase, shift, check, on_valid, smiss_init):
        sM, sC, sT, sO, sN = 60, 61, 62, 63, 34
        sI = 86
        A(f"s_mov_b32 s{sM}, {smiss_init}")
        A(f"s_mov_b32 s{sC}, 0")
        A(f"s_mov_b32 s{sN}, {POLL_LIMIT}")
        def issue(k):
            A(f"s_lshl_b32 s{sT}, -1, s{sC}")
            A(f"s_and_b32 s{sT}, s{sT}, s{sM}")
            A(f"s_cselect_b32 s{sT}, s{sT}, s{sM}")
            A(f"s_ff1_i32_b32 s{sI+k}, s{sT}")
            A(f"s_add_u32 s{sC}, s{sI+k}, 1")
            A(f"s_lshl_b32 s{sO}, s{sI+k}, {shift}")
            A(f"s_add_u32 s{sO}, s{sO}, {sbase}")
            r = slot0 + 4 * k
            A(f"buffer_load_dwordx4 v[{r}:{r+3}], {vaddr}, s[12:15], s{sO} offen sc1")
        for k in range(nslots): issue(k)
        A.lab(label)
        for k in range(nslots):
            r = slot0 + 4 * k
            A(f"s_waitcnt vmcnt({nslots-1})")
            check(r)
            A(f"s_lshl_b32 s{sT}, 1, s{sI+k}")
            A("s_cmp_eq_u64 vcc, -1")
            A(f"s_cselect_b32 s{sT}, s{sT}, 0")
            A(f"s_and_b32 s{sT}, s{sT}, s{sM}")
            A(f"s_cbranch_scc0 {label}_s{k}")
            A(f"s_xor_b32 s{sM}, s{sM}, s{sT}")
            on_valid(r)
            A(f"s_cmp_eq_u32 s{sM}, 0")
            A(f"s_cbranch_scc1 {label}_ok")
            A.lab(f"{label}_s{k}")
            issue(k)
        A(f"s_sub_u32 s{sN}, s{sN}, 1")
        A(f"s_cmp_lg_u32 s{sN}, 0")
        A(f"s_cbranch_scc1 {label}")
        A.lab(label + "_ok")
    A("v_mov_b32 v44, 0")
    A("v_lshlrev_b32 v45, 3, v0")
    A("v_cmp_eq_u32 s[52:53], 1, v33")
    A("v_cmp_eq_u32 s[54:55], 2, v33")
    A("v_cmp_eq_u32 s[56:57], 3, v33")
    A("v_lshlrev_b32 v46, 4, v33")
    A("v_lshlrev_b32 v47, 2, v0")
    A(f"s_mov_b32 s30, {hex(f2u(CSC))}")
    A(f"s_mov_b32 s31, {hex(f2u(-CSC))}")
    A("s_lshl_b32 s29, s2, 10")
    A(f"s_add_u32 s29, s29, {WS_P1}")
    A("s_lshl_b32 s32, s21, 13")
    A(f"s_add_u32 s32, s32, {WS_P1}")
    A("s_lshl_b32 s35, 1, s22")
    A("s_xor_b32 s35, s35, 0xff")
    A("s_waitcnt vmcnt(0)")
    A("s_barrier")
    if prio: A("s_setprio 3")
    ST(4)
    for w in range(4):
        A(f"ds_read_b32 v{80+w}, v44 offset:{L_ML+32*w+16}")
    for w in range(4):
        A(f"ds_read_b128 v[{64+4*w}:{64+4*w+3}], v44 offset:{L_ML+32*w}")
    for w in range(4):
        A(f"ds_read_b64 v[{84+2*w}:{84+2*w+1}], v45 offset:{L_PART+512*w}")
    A("s_waitcnt lgkmcnt(8)")
    A("v_max3_f32 v92, v80, v81, v82")
    A("v_max_f32 v92, v92, v83")
    A("v_mul_f32 v93, s31, v92")
    for w in range(4):
        A(f"v_fma_f32 v{80+w}, v{80+w}, s30, v93")
    for w in range(4):
        A(f"v_exp_f32 v{80+w}, v{80+w}")
    A("s_waitcnt lgkmcnt(4)")
    for w in range(4):
        A(f"v_add_f32 v{64+4*w}, v{64+4*w}, v{64+4*w+1}")
        A(f"v_add_f32 v{64+4*w+2}, v{64+4*w+2}, v{64+4*w+3}")
    for w in range(4):
        A(f"v_add_f32 v{64+4*w}, v{64+4*w}, v{64+4*w+2}")
    A("v_mul_f32 v94, v64, v80")
    for w in range(1, 4):
        A(f"v_fmac_f32 v94, v{64+4*w}, v{80+w}")
    A("s_waitcnt lgkmcnt(0)")
    A("v_rcp_f32 v95, v94")
    A("v_log_f32 v96, v94")
    A("v_mul_f32 v98, v84, v80")
    A("v_mul_f32 v99, v85, v80")
    for w in range(1, 4):
        A(f"v_fmac_f32 v98, v{84+2*w}, v{80+w}")
        A(f"v_fmac_f32 v99, v{85+2*w}, v{80+w}")
    A("v_sub_f32 v96, v96, v93")
    A("v_mul_f32 v98, v98, v95")
    A("v_mul_f32 v99, v99, v95")
    A(f"v_mov_b32 v51, v{hT}")
    A("v_mov_b32 v50, v96")
    A("v_mov_b32 v48, v98"); A("v_mov_b32 v49, v99")
    A("buffer_store_dwordx4 v[48:51], v35, s[12:15], s29 offen sc1")
    A("v_mov_b32 v97, 1.0")
    def chk1(r): A(f"v_cmp_eq_u32 vcc, v{r+3}, v{hT}")
    def val1(r):
        A(f"v_max_f32 v100, v96, v{r+2}")
        A(f"v_sub_f32 v101, v96, v100")
        A(f"v_sub_f32 v102, v{r+2}, v100")
        A("v_exp_f32 v101, v101")
        A("v_exp_f32 v102, v102")
        A("v_mov_b32 v96, v100")
        A("v_mul_f32 v98, v98, v101")
        A("v_mul_f32 v99, v99, v101")
        A("v_fma_f32 v97, v97, v101, v102")
        A(f"v_fmac_f32 v98, v{r}, v102")
        A(f"v_fmac_f32 v99, v{r+1}, v102")
    engine("L_e1", 8, E1, 64, "v35", "s32", 10, chk1, val1, "s35")
    ST(5)
    A("v_rcp_f32 v97, v97")
    A("s_nop 0")
    A("v_mul_f32 v98, v98, v97")
    A("v_mul_f32 v99, v99, v97")
    A("v_cvt_pk_bf16_f32 v98, v98, v99")
    A(f"ds_write_b32 v47, v98 offset:{L_O}")
    A("s_lshl_b32 s29, s21, 12")
    A("s_lshl_b32 s30, s22, 9")
    A("s_add_u32 s29, s29, s30")
    A(f"s_add_u32 s29, s29, {WS_P2}")
    A("v_lshlrev_b32 v45, 3, v0")
    A("s_waitcnt lgkmcnt(0)")
    hA2, hD2 = 104, 128
    for sx in range(4):
        A(f"ds_read_b128 v[{hA2+4*sx}:{hA2+4*sx+3}], v46 offset:{L_O + 64*sx}")
    for sx in range(4):
        A(f"s_waitcnt lgkmcnt({3-sx})")
        for cg in range(4):
            c = "0" if sx == 0 else f"v[{hD2+4*cg}:{hD2+4*cg+3}]"
            A(f"v_mfma_f32_16x16x32_bf16 v[{hD2+4*cg}:{hD2+4*cg+3}], v[{hA2+4*sx}:{hA2+4*sx+3}], v[{hWO+16*cg+4*sx}:{hWO+16*cg+4*sx+3}], {c}")
    A(f"v_mov_b32 v50, v{hT}"); A(f"v_mov_b32 v51, v{hT+1}")
    A("s_nop 5")
    A(f"v_cndmask_b32 v48, v{hD2}, v{hD2+4}, s[52:53]")
    A(f"v_cndmask_b32 v48, v48, v{hD2+8}, s[54:55]")
    A(f"v_cndmask_b32 v48, v48, v{hD2+12}, s[56:57]")
    A("s_nop 1")
    A("v_mov_b32_dpp v49, v48 quad_perm:[1,0,3,2] row_mask:0xf bank_mask:0xf")
    A("s_mov_b32 exec_lo, 0x55555555")
    A("s_mov_b32 exec_hi, 0x55555555")
    A("buffer_store_dwordx4 v[48:51], v45, s[12:15], s29 offen sc1")
    A("s_mov_b64 exec, -1")
    ST(6)
    A("s_and_b32 s29, s21, 7")
    A("s_cmp_lg_u32 s29, s22")
    A("s_cbranch_scc1 L_hend")
    A("v_lshrrev_b32 v45, 3, v0")
    A("v_lshlrev_b32 v45, 12, v45")
    A("v_and_b32 v46, 7, v0")
    A("v_lshl_add_u32 v45, v46, 4, v45")
    A("s_lshl_b32 s32, s21, 7")
    A(f"s_add_u32 s32, s32, {WS_P2}")
    A("v_mov_b32 v52, 0"); A("v_mov_b32 v53, 0")
    def chk2(r): A(f"v_cmp_eq_u64 vcc, v[{r+2}:{r+3}], v[{hT}:{hT+1}]")
    def val2(r):
        A(f"v_add_f32 v52, v52, v{r}")
        A(f"v_add_f32 v53, v53, v{r+1}")
    engine("L_e2", 4, E2, 224, "v45", "s32", 15, chk2, val2, "15")
    A("v_mov_b32 v48, v52"); A("v_mov_b32 v49, v53")
    allreduce(A, "v_add_f32", 48, 44, rors=(8,))
    allreduce(A, "v_add_f32", 49, 44, rors=(8,))
    for (r, g, x) in ((48, 56, 58), (49, 57, 59)):
        rne_hi(A, r, r)
        A(f"v_mul_f32 v{r}, v{r}, v{g}")
        rne_hi(A, r, r)
        A(f"v_add_f32 v{r}, v{r}, v{x}")
    A("v_cvt_pk_bf16_f32 v48, v48, v49")
    A("s_mov_b32 s8, s50"); A("s_mov_b32 s9, s51"); A("s_mov_b32 s10, 1024"); A("s_mov_b32 s11, 0x20000")
    A("s_lshl_b32 s29, s21, 5")
    A("v_lshlrev_b32 v46, 2, v46")
    A("s_mov_b64 exec, 0xff")
    A("buffer_store_dword v48, v46, s[8:11], s29 offen")
    A("s_cmp_lg_u32 s21, 0")
    A("s_cbranch_scc1 L_hend")
    A("s_mov_b64 exec, 1")
    A(f"buffer_store_dwordx2 v[{hT}:{hT+1}], v36, s[12:15], 0 offen sc1")
    A.lab("L_hend")
    A("s_mov_b64 exec, -1")
    A("s_waitcnt vmcnt(0)")
    if stamp:
        stamp_out(A, 1)
    A.lab("L_end")
    A("s_endpgm")

    head = HDR + f"; @launch grid=(256,1,1) block=({NW*64},1,1) lds={LDS_BYTES}\n" + f""".amdgcn_target "amdgcn-amd-amdhsa--gfx950"
.text
.globl {NAME}_kernel
.p2align 8
.type {NAME}_kernel,@function
{NAME}_kernel:
"""
    foot = f""".section .rodata,"a"
.p2align 6
.amdhsa_kernel {NAME}_kernel
  .amdhsa_next_free_vgpr 256
  .amdhsa_next_free_sgpr 102
  .amdhsa_accum_offset 256
  .amdhsa_group_segment_fixed_size 0
  .amdhsa_kernarg_size 96
  .amdhsa_user_sgpr_count 2
  .amdhsa_user_sgpr_kernarg_segment_ptr 1
  .amdhsa_system_sgpr_workgroup_id_x 1
.end_amdhsa_kernel
"""
    return head + A.text() + foot

def stamp_out(A, helper):
    A("s_memrealtime s[84:85]")
    A("s_waitcnt lgkmcnt(0)")
    A("s_mul_i32 s29, s2, 5")
    A("s_add_u32 s29, s29, s20")
    A("s_lshl_b32 s29, s29, 5")
    A(f"s_add_u32 s29, s29, {WS_DBG}")
    for i in range(8):
        A(f"v_mov_b32 v{8+i}, s{70+2*i}")
    A("v_mov_b32 v16, s29")
    A("s_mov_b64 exec, 1")
    A("global_store_dwordx4 v16, v[8:11], s[24:25]")
    A("global_store_dwordx4 v16, v[12:15], s[24:25] offset:16")
    A("s_waitcnt vmcnt(0)")

if __name__ == "__main__":
    kw = eval("dict(" + (sys.argv[2] if len(sys.argv) > 2 else "") + ")")
    open(sys.argv[1], "w").write(gen(**kw))
```

```python
import sys, math, struct

NAME = "recurrent_scan__mha_block_cached__swiglu_ffn__decode"

HDR = """; Kernarg layout for this problem (96 bytes, ptrs only, base s[0:1]):
"""

def f2u(x):
    return struct.unpack("<I", struct.pack("<f", x))[0]

WS_EPOCH = 0x0
WS_TICK  = 0x1000
WS_QP    = 0x10000
WS_P1    = 0x80000
WS_P2    = 0x100000
WS_FP    = 0x140000
WS_DBG   = 0x180000
WS_SIZE  = 0x200000

L_XN = 0
L_Q  = 2048
L_PART = 2304
L_ML = 4352
L_H  = 4480
L_O  = 4608
L_TK = 5120
L_PROG = 5888
L_FT = 6144
L_W = 8192
W_RS = 144
LDS_BYTES = 8192 + 128 * 144

DEAD = 0x10000000
OOBV = 0x7FFFFFF0

SCALE = 128 ** -0.5
LOG2E = 1.4426950408889634
CSC = SCALE * LOG2E

class Em:
    def __init__(self):
        self.L = []
        self.vm = []
    def __call__(self, s):
        self.L.append(s)
    def lab(self, s):
        self.L.append(s + ":")
    def c(self, s):
        self.L.append("; " + s)
    def vmem(self, s, tag):
        self.L.append(s); self.vm.append(tag)
    def wait_tag(self, tag):
        idx = max(i for i, t in enumerate(self.vm) if t == tag)
        n = len(self.vm) - 1 - idx
        assert n <= 63, n
        self.L.append(f"s_waitcnt vmcnt({n})")
        return n
    def text(self):
        out = []
        for x in self.L:
            if x.endswith(":") or x.startswith(";"):
                out.append(x)
            else:
                out.append("    " + x)
        return "\n".join(out) + "\n"

def allreduce(A, op, v, t, rors=(8, 4, 2, 1), x16=True, x32=True):
    for r in rors:
        A("s_nop 1")
        A(f"{op}_dpp v{v}, v{v}, v{v} row_ror:{r} row_mask:0xf bank_mask:0xf")
    if x16:
        A(f"v_mov_b32 v{t}, v{v}")
        A("s_nop 1")
        A(f"v_permlane16_swap_b32 v{v}, v{t}")
        A(f"{op} v{v}, v{v}, v{t}")
    if x32:
        A(f"v_mov_b32 v{t}, v{v}")
        A("s_nop 1")
        A(f"v_permlane32_swap_b32 v{v}, v{t}")
        A(f"{op} v{v}, v{v}, v{t}")

def rne_hi(A, dst, src):
    A(f"v_cvt_pk_bf16_f32 v{dst}, v{src}, v{src}")
    A(f"v_and_b32 v{dst}, 0xffff0000, v{dst}")

def silu(A, dst, src, t):
    A(f"v_mul_f32 v{t}, {hex(f2u(-LOG2E))}, v{src}")
    A(f"v_exp_f32 v{t}, v{t}")
    A("s_nop 0")
    A(f"v_add_f32 v{t}, 1.0, v{t}")
    A(f"v_rcp_f32 v{t}, v{t}")
    A("s_nop 0")
    A(f"v_mul_f32 v{dst}, v{src}, v{t}")

def gen(R=6, F=2, NS=58, HELPER=0, POLL_LIMIT=400000, dbg=False, nt_w="nt", stamp=False, prio=True,
        ffn=1, ffn_nt="nt", ffn_comp=True, ffn_s1=True, ffn_s2=True, gsleep=8, gexp=False,
        LEAD=2, wq_on=True, wo_on=True, psleep=2, cheapq=False, E1=4, E2=4, kpol="nt", vpol="nt"):
    A = Em()
    NW = 5
    WSTREAM = 32
    NI = 2048
    assert F == 2
    A("s_cmp_ge_u32 s2, 256")
    A("s_cbranch_scc1 L_end")
    A("v_lshrrev_b32 v1, 6, v0")
    A("v_and_b32 v0, 63, v0")
    A("s_load_dwordx2 s[24:25], s[0:1], 88")
    A("v_readfirstlane_b32 s20, v1")
    A("s_lshr_b32 s21, s2, 3")
    A("s_and_b32 s22, s2, 7")
    def ST(i):
        if stamp: A(f"s_memrealtime s[{70+2*i}:{71+2*i}]")
    if stamp:
        for i in range(8): A(f"s_mov_b32 s{70+2*i}, 0")
    ST(0)
    A(f"s_cmp_eq_u32 s20, {HELPER}")
    A("s_cbranch_scc1 L_helper")

    A("s_load_dwordx4 s[4:7], s[0:1], 8")
    if prio: A("s_setprio 1")
    if HELPER == 0:
        A("s_sub_u32 s23, s20, 1")
    else:
        A("s_mov_b32 s23, s20")
    vL = 0
    vKA, vVA, vCTR, vTICK = 2, 3, 4, 5
    vM = 6
    vO = 12
    vS = 16
    vm, vl = 10, 11
    vT, vU, vNM, vAL = 20, 21, 22, 23
    vP = 24
    vA = 28
    vQ = 44
    vRING = 64
    def kreg(k, u): return vRING + k * 32 + u * 4
    def vreg(k, u): return vRING + k * 32 + 16 + u * 4
    assert vRING + R * 32 <= 256
    sOFF = 40
    A("v_and_b32 v20, 15, v0")
    A("v_lshrrev_b32 v21, 4, v0")
    A("v_and_b32 v22, 3, v20")
    A("v_lshlrev_b32 v22, 2, v22")
    A("v_lshrrev_b32 v23, 2, v20")
    A("v_or_b32 v22, v22, v23")
    A("v_lshlrev_b32 v22, 8, v22")
    A(f"v_lshl_add_u32 v{vKA}, v21, 4, v22")
    A(f"v_lshlrev_b32 v{vVA}, 4, v0")
    A("v_and_b32 v22, 1, v20")
    A("v_mov_b32 v23, 0xffff")
    A("v_mov_b32 v24, 0xffff0000")
    A("v_cmp_eq_u32 vcc, 1, v22")
    A("v_lshrrev_b32 v25, 1, v20")
    A("s_nop 0")
    A("v_cndmask_b32 v23, v23, v24, vcc")
    for d in range(4):
        A(f"v_cmp_eq_u32 vcc, {d}, v25")
        A("s_nop 1")
        A(f"v_cndmask_b32 v{vM+d}, 0, v23, vcc")
    A(f"v_mov_b32 v{vm}, 0xff800000")
    A(f"v_mov_b32 v{vl}, 0")
    for i in range(4): A(f"v_mov_b32 v{vO+i}, 0")
    A(f"s_mov_b32 s30, {hex(f2u(CSC))}")
    A(f"s_mov_b32 s31, {hex(f2u(-CSC))}")
    A("s_lshl_b32 s26, s21, 23")
    A("s_lshl_b32 s27, s22, 2")
    A("s_add_u32 s27, s27, s23")
    A("s_waitcnt lgkmcnt(0)")
    A("s_mov_b32 s8, s4"); A("s_mov_b32 s9, s5"); A(f"s_mov_b32 s10, {hex(DEAD)}"); A("s_mov_b32 s11, 0x20000")
    A("s_mov_b32 s12, s6"); A("s_mov_b32 s13, s7"); A(f"s_mov_b32 s14, {hex(DEAD)}"); A("s_mov_b32 s15, 0x20000")
    if dbg:
        A("s_mov_b32 s16, s24"); A("s_mov_b32 s17, s25"); A("s_mov_b32 s18, 0"); A("s_mov_b32 s19, 0x20000")
    A("s_barrier")

    def static_off(n):
        k = n % R
        A(f"s_add_u32 s29, s27, {32*n}")
        A("s_lshl_b32 s29, s29, 12")
        A(f"s_add_u32 s{sOFF+k}, s29, s26")
    def issueK(n):
        k = n % R
        for u in range(4):
            r = kreg(k, u)
            A.vmem(f"buffer_load_dwordx4 v[{r}:{r+3}], v{vKA}, s[8:11], s{sOFF+k} offen offset:{u*64} {kpol}", ("K", n))
    def issueV(n):
        k = n % R
        for u in range(4):
            r = vreg(k, u)
            A.vmem(f"buffer_load_dwordx4 v[{r}:{r+3}], v{vVA}, s[12:15], s{sOFF+k} offen offset:{u*1024} {vpol}", ("V", n))
    def qk_mfma(n):
        k = n % R
        for u in range(4):
            r = kreg(k, u)
            c = "0" if u == 0 else f"v[{vS}:{vS+3}]"
            A(f"v_mfma_f32_16x16x32_bf16 v[{vS}:{vS+3}], v[{r}:{r+3}], v[{vQ+4*u}:{vQ+4*u+3}], {c}")
    def softmax(n, pad):
        if pad > 0: A(f"s_nop {pad-1}")
        A(f"v_max3_f32 v{vT}, v{vS}, v{vS+1}, v{vS+2}")
        A(f"v_max_f32 v{vT}, v{vT}, v{vS+3}")
        A(f"v_mov_b32 v{vU}, v{vT}")
        A("s_nop 1")
        A(f"v_permlane16_swap_b32 v{vT}, v{vU}")
        A(f"v_max_f32 v{vT}, v{vT}, v{vU}")
        A(f"v_mov_b32 v{vU}, v{vT}")
        A("s_nop 1")
        A(f"v_permlane32_swap_b32 v{vT}, v{vU}")
        A(f"v_max3_f32 v{vT}, v{vT}, v{vU}, v{vm}")
        A(f"v_mul_f32 v{vNM}, s31, v{vT}")
        A(f"v_fma_f32 v{vAL}, v{vm}, s30, v{vNM}")
        for i in range(4):
            A(f"v_fma_f32 v{vP+i}, v{vS+i}, s30, v{vNM}")
        A(f"v_exp_f32 v{vAL}, v{vAL}")
        for i in range(4):
            A(f"v_exp_f32 v{vP+i}, v{vP+i}")
        A(f"v_mov_b32 v{vm}, v{vT}")
        for i in range(4):
            A(f"v_mul_f32 v{vO+i}, v{vO+i}, v{vAL}")
        A(f"v_add_f32 v{vT}, v{vP}, v{vP+1}")
        A(f"v_add_f32 v{vU}, v{vP+2}, v{vP+3}")
        for i in range(4):
            A(f"v_cvt_pk_bf16_f32 v{vP+i}, v{vP+i}, v{vP+i}")
        A(f"v_add_f32 v{vT}, v{vT}, v{vU}")
        A(f"v_fma_f32 v{vl}, v{vl}, v{vAL}, v{vT}")
        for i in range(4):
            for d in range(4):
                A(f"v_and_b32 v{vA+4*i+d}, v{vP+i}, v{vM+d}")
    def pv_mfma(n):
        k = n % R
        for u in range(4):
            r = vreg(k, u)
            A(f"v_mfma_f32_16x16x32_bf16 v[{vO}:{vO+3}], v[{vA+4*u}:{vA+4*u+3}], v[{r}:{r+3}], v[{vO}:{vO+3}]")

    units = []
    def issue_unit(u):
        n = u // 2
        if u % 2 == 0:
            static_off(n); issueK(n)
        else:
            issueV(n)
    def land_unit(u):
        A.wait_tag(("K" if u % 2 == 0 else "V", u // 2))
    for u in range(F): issue_unit(u)
    for u in range(2 * R - F):
        land_unit(u); issue_unit(u + F)
    ST(1)
    A("s_barrier")
    ST(2)
    A("v_lshrrev_b32 v20, 4, v0")
    A("v_lshlrev_b32 v20, 4, v20")
    for s in range(4):
        A(f"ds_read_b128 v[{vQ+4*s}:{vQ+4*s+3}], v20 offset:{L_Q + s*64}")
    A("s_waitcnt lgkmcnt(0)")
    P = 0; I = 2 * R; Ld = 2 * R - F
    def proc_unit(u):
        n = u // 2
        if u % 2 == 0:
            qk_mfma(n); softmax(n, 8)
        else:
            A("s_nop 1")
            pv_mfma(n)
    state_ok = lambda: (P == Ld and P % 2 == 0 and I == P + F)
    steps = 0
    while not state_ok():
        steps += 1
        assert steps < 100
        while P <= I - 2 * R:
            proc_unit(P); P += 1
        if I - Ld < F or True:
            land_unit(Ld); Ld += 1
            issue_unit(I); I += 1
        k = 0
        while P < Ld and k < 2:
            proc_unit(P); P += 1; k += 1
        if P == Ld and P % 2 == 1:
            land_unit(Ld); Ld += 1
            issue_unit(I); I += 1
            proc_unit(P); P += 1
    n0 = P // 2
    assert I == 2 * n0 + 2
    A.c(f"catch-up done: loop starts at item {n0}, slot {n0 % R}")
    ST(3)
    assert n0 + 2 <= NS
    POOL = NI - 32 * NS
    vTKD = 60
    A(f"s_add_u32 s27, s27, {32*(n0+1)}")
    A(f"s_mov_b32 s28, {n0+1}")
    A(f"v_mov_b32 v{vCTR}, {L_TK - 4*(NS - (n0+2))}")
    A(f"v_mov_b32 v{vTICK}, {n0+1}")
    A("s_lshl_b32 s29, s23, 2")
    A(f"s_add_u32 s29, s29, {L_PROG}")
    A("v_mov_b32 v1, s29")
    A(f"s_add_u32 s35, s23, {32*NS}")
    if dbg:
        A("s_mov_b32 s60, 0"); A("s_mov_b32 s61, 0")
    A.lab("L_loop")
    spins = []
    for kk in range(R):
        n = n0 + kk
        k = n % R; k2 = (n + 1) % R
        A.c(f"--- item slot {k}")
        A(f"s_cmp_ge_u32 s{sOFF+k}, {hex(DEAD)}")
        A("s_cbranch_scc1 L_fin")
        A(f"s_cmp_lt_u32 s28, {NS}")
        A(f"s_cbranch_scc1 L_stat{kk}")
        A("s_waitcnt lgkmcnt(0)")
        A(f"v_readfirstlane_b32 s29, v{vTKD}")
        A("s_cmp_eq_u32 s29, -1")
        A(f"s_cbranch_scc1 L_spin{kk}")
        A.lab(f"L_back{kk}")
        A("s_add_u32 s27, s29, s35")
        A.lab(f"L_stat{kk}")
        A("s_lshl_b32 s33, s27, 12")
        A("s_add_u32 s33, s33, s26")
        A(f"s_cmp_lt_u32 s27, {NI}")
        A(f"s_cselect_b32 s{sOFF+k2}, s33, {hex(DEAD)}")
        if dbg:
            A("s_cselect_b32 s62, s27, 0")
            A("s_cselect_b32 s63, 1, 0")
            A("s_add_u32 s60, s60, s62")
            A("s_add_u32 s61, s61, s63")
        A("s_add_u32 s27, s27, 32")
        A("s_add_u32 s28, s28, 1")
        A("s_waitcnt vmcnt(4)")
        for u in range(4):
            r = kreg(k2, u)
            A(f"buffer_load_dwordx4 v[{r}:{r+3}], v{vKA}, s[8:11], s{sOFF+k2} offen offset:{u*64} {kpol}")
        A(f"ds_write_b32 v1, v{vTICK}")
        A(f"ds_read_b32 v{vTKD}, v{vCTR}")
        qk_mfma(n)
        A(f"v_add_u32 v{vTICK}, 1, v{vTICK}")
        A(f"v_add_u32 v{vCTR}, 4, v{vCTR}")
        softmax(n, 6)
        A("s_waitcnt vmcnt(4)")
        for u in range(4):
            r = vreg(k2, u)
            A(f"buffer_load_dwordx4 v[{r}:{r+3}], v{vVA}, s[12:15], s{sOFF+k2} offen offset:{u*1024} {vpol}")
        pv_mfma(n)
        spins.append(kk)
    A("s_branch L_loop")
    for kk in spins:
        A.lab(f"L_spin{kk}")
        A(f"s_mov_b32 s34, {POLL_LIMIT}")
        A(f"v_add_u32 v{vT}, -4, v{vCTR}")
        A.lab(f"L_spin{kk}_l")
        A(f"ds_read_b32 v{vTKD}, v{vT}")
        A("s_waitcnt lgkmcnt(0)")
        A(f"v_readfirstlane_b32 s29, v{vTKD}")
        A("s_cmp_lg_u32 s29, -1")
        A(f"s_cbranch_scc1 L_back{kk}")
        A("s_sleep 1")
        A("s_sub_u32 s34, s34, 1")
        A("s_cmp_lg_u32 s34, 0")
        A(f"s_cbranch_scc1 L_spin{kk}_l")
        A(f"s_mov_b32 s29, {POOL}")
        A(f"s_branch L_back{kk}")
    A.lab("L_fin")
    A("s_nop 7")
    A("v_lshrrev_b32 v20, 4, v0")
    A("v_and_b32 v21, 15, v0")
    A("s_lshl_b32 s29, s23, 5")
    A(f"s_add_u32 s29, s29, {L_ML}")
    A("v_lshlrev_b32 v22, 2, v20")
    A("v_add_u32 v22, s29, v22")
    A(f"ds_write_b32 v22, v{vl}")
    A("v_mov_b32 v22, s29")
    A(f"ds_write_b32 v22, v{vm} offset:16")
    A("s_lshl_b32 s29, s23, 9")
    A(f"s_add_u32 s29, s29, {L_PART}")
    A("v_lshlrev_b32 v22, 5, v21")
    A("v_lshl_add_u32 v22, v20, 4, v22")
    A("v_add_u32 v22, s29, v22")
    A("s_mov_b32 exec_hi, 0")
    A(f"ds_write_b128 v22, v[{vO}:{vO+3}]")
    A("s_mov_b32 exec_hi, -1")
    ST(4)
    A("s_waitcnt lgkmcnt(0)")
    A("s_barrier")
    ST(5)
    A("s_waitcnt vmcnt(0)")
    if dbg:
        A("s_lshl_b32 s29, s2, 2")
        A("s_add_u32 s29, s29, s23")
        A("s_lshl_b32 s29, s29, 3")
        A(f"s_add_u32 s29, s29, {WS_DBG + 0x10000}")
        A("v_mov_b32 v8, s60"); A("v_mov_b32 v9, s61"); A("v_mov_b32 v12, 0")
        A(f"s_mov_b32 s18, {hex(WS_SIZE)}")
        A("s_mov_b64 exec, 1")
        A("buffer_store_dwordx2 v[8:9], v12, s[16:19], s29 offen")
        A("s_waitcnt vmcnt(0)")
    if stamp:
        stamp_out(A, 0)
    A("s_endpgm")

    A.lab("L_helper")
    A.vm = []
    A("s_load_dwordx2 s[4:5], s[0:1], 0")
    A("s_load_dwordx4 s[36:39], s[0:1], 24")
    A("s_load_dwordx4 s[44:47], s[0:1], 48")
    A("s_load_dwordx4 s[48:51], s[0:1], 64")
    if prio: A("s_setprio 3")
    hE = 2
    hT = 4
    hX = 8
    hF = 12
    hW = 64
    hM = 20
    hD = 28
    A("v_and_b32 v32, 15, v0")
    A("v_lshrrev_b32 v33, 4, v0")
    A("s_lshl_b32 s29, s22, 19")
    A("s_lshl_b32 s30, s21, 8")
    A("s_add_u32 s29, s29, s30")
    A("v_lshlrev_b32 v34, 17, v33")
    A("v_lshl_add_u32 v34, v32, 4, v34")
    A("v_add_u32 v34, s29, v34")
    A("v_lshlrev_b32 v35, 4, v0")
    A("v_mov_b32 v36, 0")
    A("s_waitcnt lgkmcnt(0)")
    A("s_mov_b32 s12, s24"); A("s_mov_b32 s13, s25"); A(f"s_mov_b32 s14, {hex(WS_SIZE)}"); A("s_mov_b32 s15, 0x20000")
    A("s_mov_b32 s8, s4"); A("s_mov_b32 s9, s5"); A("s_mov_b32 s10, 1024"); A("s_mov_b32 s11, 0x20000")
    A("s_mov_b32 s16, s36"); A("s_mov_b32 s17, s37"); A(f"s_mov_b32 s18, {512*8192}"); A("s_mov_b32 s19, 0x20000")
    A.vmem(f"buffer_load_dwordx4 v[{hX}:{hX+3}], v35, s[8:11], 0 offen", "x")
    A.vmem(f"buffer_load_dwordx2 v[{hE}:{hE+1}], v36, s[12:15], 0 offen sc1", "E")
    for i in range(16):
        A(f"s_mov_b32 s29, {i*8192}")
        if wq_on or i == 0: A.vmem(f"buffer_load_dwordx4 v[{hW+4*i}:{hW+4*i+3}], v34, s[16:19], s29 offen {nt_w}", "wq")
    A("s_barrier")
    A("s_cmp_lg_u32 s22, 0")
    A("s_cbranch_scc1 L_nozero")
    A("s_lshl_b32 s29, s21, 7")
    A(f"s_add_u32 s29, s29, {WS_TICK}")
    A("s_mov_b64 exec, 1")
    A("buffer_store_dword v36, v36, s[12:15], s29 offen sc1")
    A("s_mov_b64 exec, -1")
    A.lab("L_nozero")
    A("v_lshlrev_b32 v37, 2, v0")
    A("v_mov_b32 v38, -1")
    for q in range(3):
        A(f"ds_write_b32 v37, v38 offset:{L_TK + 256*q}")
    A(f"ds_write_b32 v37, v36 offset:{L_PROG}")
    A("v_and_b32 v37, 1, v32")
    A("v_mov_b32 v38, 0xffff")
    A("v_mov_b32 v39, 0xffff0000")
    A("v_cmp_eq_u32 vcc, 1, v37")
    A("v_lshrrev_b32 v40, 1, v32")
    A("v_and_b32 v41, 3, v40")
    A("v_cndmask_b32 v38, v38, v39, vcc")
    for d in range(4):
        A(f"v_cmp_eq_u32 vcc, {d}, v40")
        A("s_nop 1")
        A(f"v_cndmask_b32 v{hM+d}, 0, v38, vcc")
        A(f"v_cmp_eq_u32 vcc, {d}, v41")
        A("s_nop 1")
        A(f"v_cndmask_b32 v{hM+4+d}, 0, v38, vcc")
    ST(1)
    A(f"s_waitcnt vmcnt({16 if wq_on else 1})")
    for q in range(4):
        A(f"v_lshlrev_b32 v{hF+2*q}, 16, v{hX+q}")
        A(f"v_and_b32 v{hF+2*q+1}, 0xffff0000, v{hX+q}")
    A(f"v_add_co_u32 v{hT}, vcc, 1, v{hE}")
    A("s_nop 1")
    A(f"v_addc_co_u32 v{hT+1}, vcc, 0, v{hE+1}, vcc")
    A(f"v_add_f32 v42, v{hF}, v{hF+1}")
    for q in range(2, 8):
        A(f"v_add_f32 v42, v42, v{hF+q}")
    allreduce(A, "v_add_f32", 42, 43)
    A(f"v_mul_f32 v42, {hex(f2u(1/512))}, v42")
    A(f"v_sub_f32 v44, v{hF}, v42")
    A("v_mul_f32 v45, v44, v44")
    for q in range(1, 8):
        A(f"v_sub_f32 v44, v{hF+q}, v42")
        A("v_fmac_f32 v45, v44, v44")
    allreduce(A, "v_add_f32", 45, 43)
    A(f"v_mul_f32 v45, {hex(f2u(1/512))}, v45")
    rne_hi(A, 42, 42)
    rne_hi(A, 45, 45)
    A(f"v_add_f32 v45, {hex(f2u(1e-5))}, v45")
    rne_hi(A, 45, 45)
    A("v_sqrt_f32 v45, v45")
    A("s_nop 0")
    rne_hi(A, 45, 45)
    A("v_rcp_f32 v46, v45")
    for q in range(8):
        A(f"v_sub_f32 v{hF+q}, v{hF+q}, v42")
        rne_hi(A, hF + q, hF + q)
        A(f"v_mul_f32 v44, v{hF+q}, v46")
        A(f"v_fma_f32 v47, -v44, v45, v{hF+q}")
        A(f"v_fma_f32 v44, v47, v46, v44")
        rne_hi(A, hF + q, 44)
    A("v_lshlrev_b32 v44, 5, v0")
    A(f"ds_write_b128 v44, v[{hF}:{hF+3}] offset:{L_XN}")
    A(f"ds_write_b128 v44, v[{hF+4}:{hF+7}] offset:{L_XN+16}")
    A("s_lshl_b32 s29, s22, 8")
    A("v_lshlrev_b32 v44, 6, v33")
    A("v_add_u32 v44, s29, v44")
    A("s_waitcnt lgkmcnt(0)")
    hXA = 128
    for q in range(4):
        A(f"ds_read_b128 v[{hXA+4*q}:{hXA+4*q+3}], v44 offset:{L_XN+16*q}")
    A("s_waitcnt lgkmcnt(0)")
    for i in range(16):
        A(f"v_cvt_pk_bf16_f32 v{hXA+i}, v{hXA+i}, v{hXA+i}")
    A("s_waitcnt vmcnt(0)")
    ST(2)
    hA = 144
    for i in range(16):
        a = hA + 4 * (i & 1)
        for d in range(4):
            A(f"v_and_b32 v{a+d}, v{hXA+i}, v{hM+d}")
        A("s_nop 1")
        c = "0" if i == 0 else f"v[{hD}:{hD+3}]"
        A(f"v_mfma_f32_16x16x32_bf16 v[{hD}:{hD+3}], v[{a}:{a+3}], v[{hW+4*i}:{hW+4*i+3}], {c}")
    A("s_lshl_b32 s29, s2, 10")
    A(f"s_add_u32 s29, s29, {WS_QP}")
    A("v_and_b32 v44, 1, v33")
    A("v_lshlrev_b32 v44, 5, v44")
    A("v_lshrrev_b32 v45, 1, v33")
    A("v_lshl_add_u32 v44, v45, 4, v44")
    A("v_lshl_add_u32 v6, v32, 6, v44")
    A("s_nop 3")
    def publish1(dreg, vaddr, soff):
        A(f"v_permlane32_swap_b32 v{dreg}, v{dreg+2}")
        A(f"v_permlane32_swap_b32 v{dreg+1}, v{dreg+3}")
        A(f"v_mov_b32 v50, v{hT}"); A(f"v_mov_b32 v51, v{hT+1}")
        A(f"v_mov_b32 v48, v{dreg}"); A(f"v_mov_b32 v49, v{dreg+1}")
        A(f"buffer_store_dwordx4 v[48:51], v{vaddr}, s[12:15], {soff} offen sc1")
    publish1(hD, 6, "s29")
    def poll(label, loads, nregs_tagpairs, extra_ok=None, sleep=0):
        A(f"s_mov_b32 s34, {POLL_LIMIT}")
        A.lab(label)
        loads()
        A("s_waitcnt vmcnt(0)")
        A("s_mov_b64 s[30:31], -1")
        for idx, tp in enumerate(nregs_tagpairs):
            A(f"v_cmp_eq_u64 vcc, v[{tp}:{tp+1}], v[{hT}:{hT+1}]")
            if extra_ok and idx in extra_ok:
                A(f"s_or_b64 vcc, vcc, {extra_ok[idx]}")
            A("s_and_b64 s[30:31], s[30:31], vcc")
        A("s_cmp_eq_u64 s[30:31], -1")
        A(f"s_cbranch_scc1 {label}_ok")
        if sleep: A(f"s_sleep {sleep}")
        A("s_sub_u32 s34, s34, 1")
        A("s_cmp_lg_u32 s34, 0")
        A(f"s_cbranch_scc1 {label}")
        A.lab(label + "_ok")
    hG = 64
    A("s_lshl_b32 s29, s21, 13")
    A(f"s_add_u32 s29, s29, {WS_QP}")
    def qloads():
        for jj in range(8):
            A(f"s_add_u32 s33, s29, {jj*1024}")
            A(f"buffer_load_dwordx4 v[{hG+4*jj}:{hG+4*jj+3}], v35, s[12:15], s33 offen sc1")
    if cheapq:
        A("v_lshlrev_b32 v45, 10, v0")
        A("v_add_u32 v45, 1008, v45")
        A(f"v_mov_b32 v46, {hex(OOBV)}")
        A("v_cmp_gt_u32 vcc, 8, v0")
        A("s_nop 1")
        A("v_cndmask_b32 v45, v46, v45, vcc")
        A("s_mov_b32 s52, 0xffffff00"); A("s_mov_b32 s53, -1")
        def qpre():
            A(f"buffer_load_dwordx4 v[{hG}:{hG+3}], v45, s[12:15], s29 offen sc1")
        poll("L_pq0", qpre, [hG + 2], extra_ok={0: "s[52:53]"}, sleep=psleep)
    poll("L_pq", qloads, [hG + 4 * jj + 2 for jj in range(8)])
    A(f"v_add_f32 v44, v{hG}, v{hG+4}")
    A(f"v_add_f32 v45, v{hG+1}, v{hG+5}")
    for jj in range(2, 8):
        A(f"v_add_f32 v44, v44, v{hG+4*jj}")
        A(f"v_add_f32 v45, v45, v{hG+4*jj+1}")
    A("v_cvt_pk_bf16_f32 v44, v44, v45")
    A("v_lshlrev_b32 v45, 2, v0")
    A(f"ds_write_b32 v45, v44 offset:{L_Q}")
    A("s_waitcnt lgkmcnt(0)")
    ST(3)
    A("s_barrier")
    if prio: A("s_setprio 0")

    for w in range(256):
        assert (w * 171) >> 10 == w // 6
    A("s_mul_i32 s29, s2, 171")
    A("s_lshr_b32 s29, s29, 10")
    A("s_mul_i32 s30, s29, 6")
    A("s_cmp_lg_u32 s30, s2")
    A("s_cbranch_scc1 L_noffn")
    if not ffn: A("s_branch L_noffn")
    A("s_mov_b32 s35, s29")
    A("s_mov_b32 s8, s44"); A("s_mov_b32 s9, s45"); A(f"s_mov_b32 s10, {512*2752}"); A("s_mov_b32 s11, 0x20000")
    A("s_mov_b32 s16, s46"); A("s_mov_b32 s17, s47"); A(f"s_mov_b32 s18, {512*2752}"); A("s_mov_b32 s19, 0x20000")
    A("v_lshrrev_b32 v44, 2, v0")
    A("v_and_b32 v45, 3, v0")
    A(f"s_mov_b32 s30, {32*2752}")
    A("v_mul_lo_u32 v46, v44, s30")
    A("v_lshl_add_u32 v46, v45, 4, v46")
    A("s_lshl_b32 s30, s35, 6")
    A("v_add_u32 v46, s30, v46")
    A("v_lshlrev_b32 v47, 7, v44")
    hAG = 12
    hAU = 56
    for q in range(8):
        A(f"v_mov_b32 v{hAG+q}, 0"); A(f"v_mov_b32 v{hAU+q}, 0")
    A("s_mov_b32 s31, 0")
    A("s_mov_b32 s32, 4")
    A.lab("L_f1")
    for i in range(8):
        A(f"s_add_u32 s33, s31, {i*2752}")
        if ffn_s1:
            A(f"buffer_load_dwordx4 v[{64+4*i}:{64+4*i+3}], v46, s[8:11], s33 offen {ffn_nt}")
            A(f"buffer_load_dwordx4 v[{96+4*i}:{96+4*i+3}], v46, s[16:19], s33 offen {ffn_nt}")
    A(f"ds_read_b128 v[128:131], v47 offset:{L_XN}")
    A(f"ds_read_b128 v[132:135], v47 offset:{L_XN+16}")
    A("v_add_u32 v47, 32, v47")
    A(f"s_add_u32 s31, s31, {8*2752}")
    A("s_waitcnt vmcnt(0) lgkmcnt(0)")
    for i in range(8 if ffn_comp else 0):
        for (base, acc) in ((64, hAG), (96, hAU)):
            for q in range(4):
                r = base + 4 * i + q
                A(f"v_lshlrev_b32 v44, 16, v{r}")
                A(f"v_and_b32 v45, 0xffff0000, v{r}")
                A(f"v_fmac_f32 v{acc+2*q}, v44, v{128+i}")
                A(f"v_fmac_f32 v{acc+2*q+1}, v45, v{128+i}")
    A("s_sub_u32 s32, s32, 1")
    A("s_cmp_lg_u32 s32, 0")
    A("s_cbranch_scc1 L_f1")
    for q in range(8):
        allreduce(A, "v_add_f32", hAG + q, 44, rors=(4, 8))
        allreduce(A, "v_add_f32", hAU + q, 44, rors=(4, 8))
    for q in range(8):
        rne_hi(A, hAG + q, hAG + q)
        silu(A, hAG + q, hAG + q, 44)
        rne_hi(A, hAG + q, hAG + q)
        rne_hi(A, hAU + q, hAU + q)
        A(f"v_mul_f32 v{hAG+q}, v{hAG+q}, v{hAU+q}")
        rne_hi(A, hAG + q, hAG + q)
    A("v_and_b32 v45, 3, v0")
    A("v_lshlrev_b32 v45, 5, v45")
    A("s_mov_b64 exec, 15")
    A(f"ds_write_b128 v45, v[{hAG}:{hAG+3}] offset:{L_H}")
    A(f"ds_write_b128 v45, v[{hAG+4}:{hAG+7}] offset:{L_H+16}")
    A("s_mov_b64 exec, -1")
    A("s_mov_b32 s8, s48"); A("s_mov_b32 s9, s49"); A(f"s_mov_b32 s10, {1376*1024}"); A("s_mov_b32 s11, 0x20000")
    A("s_lshl_b32 s31, s35, 15")
    A(f"v_mov_b32 v47, {L_H}")
    for q in range(8): A(f"v_mov_b32 v{hAU+q}, 0")
    A("s_mov_b32 s32, 4")
    A("s_waitcnt lgkmcnt(0)")
    A.lab("L_f2")
    for i in range(8):
        A(f"s_add_u32 s33, s31, {i*1024}")
        if ffn_s2: A(f"buffer_load_dwordx4 v[{64+4*i}:{64+4*i+3}], v35, s[8:11], s33 offen {ffn_nt}")
    A("ds_read_b128 v[128:131], v47")
    A("ds_read_b128 v[132:135], v47 offset:16")
    A("v_add_u32 v47, 32, v47")
    A(f"s_add_u32 s31, s31, {8*1024}")
    A("s_waitcnt vmcnt(0) lgkmcnt(0)")
    for i in range(8 if ffn_comp else 0):
        for q in range(4):
            r = 64 + 4 * i + q
            A(f"v_lshlrev_b32 v44, 16, v{r}")
            A(f"v_and_b32 v45, 0xffff0000, v{r}")
            A(f"v_fmac_f32 v{hAU+2*q}, v44, v{128+i}")
            A(f"v_fmac_f32 v{hAU+2*q+1}, v45, v{128+i}")
    A("s_sub_u32 s32, s32, 1")
    A("s_cmp_lg_u32 s32, 0")
    A("s_cbranch_scc1 L_f2")
    A("v_lshlrev_b32 v44, 5, v0")
    A(f"ds_write_b128 v44, v[{hAU}:{hAU+3}] offset:{L_FT}")
    A(f"ds_write_b128 v44, v[{hAU+4}:{hAU+7}] offset:{L_FT+16}")
    A("v_lshlrev_b32 v44, 3, v0")
    A("s_waitcnt lgkmcnt(0)")
    for q in range(4):
        A(f"ds_read_b64 v[{64+4*q}:{64+4*q+1}], v44 offset:{L_FT + 512*q}")
        A(f"v_mov_b32 v{64+4*q+2}, v{hT}"); A(f"v_mov_b32 v{64+4*q+3}, v{hT+1}")
    A("s_lshl_b32 s29, s35, 12")
    A(f"s_add_u32 s29, s29, {WS_FP}")
    A("s_waitcnt lgkmcnt(0)")
    for q in range(4):
        A(f"buffer_store_dwordx4 v[{64+4*q}:{64+4*q+3}], v35, s[12:15], s29 offen offset:{1024*q} sc1")
    A.lab("L_noffn")

    A("s_mov_b32 s16, s38"); A("s_mov_b32 s17, s39"); A(f"s_mov_b32 s18, {4096*1024}"); A("s_mov_b32 s19, 0x20000")
    hWO = 160
    A("v_lshrrev_b32 v44, 3, v0")
    A("v_lshlrev_b32 v44, 14, v44")
    A("v_and_b32 v45, 7, v0")
    A("v_lshl_add_u32 v44, v45, 4, v44")
    A("s_lshl_b32 s29, s21, 17")
    A("s_lshl_b32 s30, s22, 7")
    A("s_add_u32 s29, s29, s30")
    for i in range(16):
        A(f"s_add_u32 s33, s29, {i*1024}")
        if wo_on: A(f"buffer_load_dwordx4 v[{hWO+4*i}:{hWO+4*i+3}], v44, s[16:19], s33 offen {nt_w}")
    A("v_lshrrev_b32 v44, 3, v0")
    A(f"v_mul_u32_u24 v44, {16*W_RS}, v44")
    A("v_and_b32 v45, 7, v0")
    A("v_lshl_add_u32 v44, v45, 4, v44")
    A("s_waitcnt vmcnt(0)")
    for i in range(16):
        A(f"ds_write_b128 v44, v[{hWO+4*i}:{hWO+4*i+3}] offset:{L_W + i*W_RS}")
        if i % 8 == 7: A("s_waitcnt lgkmcnt(0)")
    A(f"v_mul_u32_u24 v44, {8*W_RS}, v33")
    A("v_lshl_add_u32 v44, v32, 1, v44")
    for cg in range(4):
        for sx in range(4):
            for e in range(8):
                A(f"ds_read_u16 v{64+e}, v44 offset:{L_W + (32*sx + e)*W_RS + 32*cg}")
            A("s_waitcnt lgkmcnt(0)")
            for d in range(4):
                A(f"v_lshl_or_b32 v{hWO + 16*cg + 4*sx + d}, v{64+2*d+1}, 16, v{64+2*d}")

    A("s_lshl_b32 s29, s21, 7")
    A(f"s_add_u32 s29, s29, {WS_TICK}")
    A("v_mov_b32 v44, s29")
    A(f"v_mov_b32 v45, {hex(OOBV)}")
    A("v_cmp_eq_u32 vcc, 0, v0")
    A(f"v_mov_b32 v46, {L_PROG}")
    A(f"v_mov_b32 v47, {L_TK}")
    A("v_cndmask_b32 v44, v45, v44, vcc")
    A(f"s_mov_b32 s36, {NS - LEAD}")
    A("s_mov_b32 s37, 0")
    A.lab("L_tk")
    A(f"s_mov_b32 s34, {POLL_LIMIT}")
    A.lab("L_tkw")
    A("ds_read_b128 v[64:67], v46")
    A("s_waitcnt lgkmcnt(0)")
    A("v_max3_u32 v64, v64, v65, v66")
    A("v_max_u32 v64, v64, v67")
    A("s_nop 0")
    A("v_readfirstlane_b32 s29, v64")
    A("s_cmp_ge_u32 s29, s36")
    A("s_cbranch_scc1 L_tkgo")
    A(f"s_sleep {psleep}")
    A("s_sub_u32 s34, s34, 1")
    A("s_cmp_lg_u32 s34, 0")
    A("s_cbranch_scc1 L_tkw")
    A.lab("L_tkgo")
    A("v_mov_b32 v65, 4")
    A("buffer_atomic_add v65, v44, s[12:15], 0 offen sc0 sc1")
    A("s_waitcnt vmcnt(0)")
    A("v_readfirstlane_b32 s29, v65")
    A("s_cmp_lt_u32 s37, 180")
    A(f"s_cselect_b32 s29, s29, {NI - 32*NS}")
    A("v_mov_b32 v65, s29")
    A("ds_write_b32 v47, v65")
    A("v_add_u32 v47, 4, v47")
    A("s_add_u32 s36, s36, 1")
    A("s_add_u32 s37, s37, 1")
    A(f"s_cmp_lt_u32 s29, {NI - 32*NS}")
    A("s_cbranch_scc1 L_tk")

    A("s_and_b32 s29, s21, 7")
    A("s_cmp_lg_u32 s29, s22")
    A("s_cbranch_scc1 L_nocons1")
    hGG = 56
    A("v_lshrrev_b32 v45, 3, v0")
    A("v_lshlrev_b32 v45, 12, v45")
    A("v_and_b32 v46, 7, v0")
    A("v_lshl_add_u32 v45, v46, 4, v45")
    A("s_lshl_b32 s29, s21, 7")
    A(f"s_add_u32 s29, s29, {WS_FP}")
    A(f"v_mov_b32 v47, {hex(OOBV)}")
    A("v_cmp_gt_u32 vcc, 24, v0")
    A("s_nop 1")
    A("v_cndmask_b32 v47, v47, v45, vcc")
    A("s_mov_b32 s52, 0xff000000"); A("s_mov_b32 s53, -1")
    def floads():
        for k in range(6):
            A(f"s_add_u32 s33, s29, {k*8*4096}")
            va = 47 if k == 5 else 45
            A(f"buffer_load_dwordx4 v[{64+4*k}:{64+4*k+3}], v{va}, s[12:15], s33 offen sc1")
    if ffn and not gexp:
        poll("L_pf", floads, [64 + 4 * k + 2 for k in range(6)], extra_ok={5: "s[52:53]"}, sleep=gsleep)
    A("v_add_f32 v56, v64, v68"); A("v_add_f32 v57, v65, v69")
    for k in range(2, 6):
        A(f"v_add_f32 v56, v56, v{64+4*k}"); A(f"v_add_f32 v57, v57, v{64+4*k+1}")
    allreduce(A, "v_add_f32", 56, 44, rors=(8,))
    allreduce(A, "v_add_f32", 57, 44, rors=(8,))
    for r in (56, 57):
        rne_hi(A, r, r)
        silu(A, r, r, 44)
        rne_hi(A, r, r)
    A("s_mov_b32 s8, s4"); A("s_mov_b32 s9, s5"); A("s_mov_b32 s10, 1024"); A("s_mov_b32 s11, 0x20000")
    A("s_lshl_b32 s29, s21, 5")
    A("v_lshlrev_b32 v46, 2, v46")
    A("buffer_load_dword v58, v46, s[8:11], s29 offen")
    A("s_waitcnt vmcnt(0)")
    A("v_and_b32 v59, 0xffff0000, v58")
    A("v_lshlrev_b32 v58, 16, v58")
    A.lab("L_nocons1")

    def engine(label, nitems, nslots, slot0, vaddr, sbase, shift, check, on_valid, smiss_init):
        sM, sC, sT, sO, sN = 60, 61, 62, 63, 34
        sI = 86
        A(f"s_mov_b32 s{sM}, {smiss_init}")
        A(f"s_mov_b32 s{sC}, 0")
        A(f"s_mov_b32 s{sN}, {POLL_LIMIT}")
        def issue(k):
            A(f"s_lshl_b32 s{sT}, -1, s{sC}")
            A(f"s_and_b32 s{sT}, s{sT}, s{sM}")
            A(f"s_cselect_b32 s{sT}, s{sT}, s{sM}")
            A(f"s_ff1_i32_b32 s{sI+k}, s{sT}")
            A(f"s_add_u32 s{sC}, s{sI+k}, 1")
            A(f"s_lshl_b32 s{sO}, s{sI+k}, {shift}")
            A(f"s_add_u32 s{sO}, s{sO}, {sbase}")
            r = slot0 + 4 * k
            A(f"buffer_load_dwordx4 v[{r}:{r+3}], {vaddr}, s[12:15], s{sO} offen sc1")
        for k in range(nslots): issue(k)
        A.lab(label)
        for k in range(nslots):
            r = slot0 + 4 * k
            A(f"s_waitcnt vmcnt({nslots-1})")
            check(r)
            A(f"s_lshl_b32 s{sT}, 1, s{sI+k}")
            A("s_cmp_eq_u64 vcc, -1")
            A(f"s_cselect_b32 s{sT}, s{sT}, 0")
            A(f"s_and_b32 s{sT}, s{sT}, s{sM}")
            A(f"s_cbranch_scc0 {label}_s{k}")
            A(f"s_xor_b32 s{sM}, s{sM}, s{sT}")
            on_valid(r)
            A(f"s_cmp_eq_u32 s{sM}, 0")
            A(f"s_cbranch_scc1 {label}_ok")
            A.lab(f"{label}_s{k}")
            issue(k)
        A(f"s_sub_u32 s{sN}, s{sN}, 1")
        A(f"s_cmp_lg_u32 s{sN}, 0")
        A(f"s_cbranch_scc1 {label}")
        A.lab(label + "_ok")
    A("v_mov_b32 v44, 0")
    A("v_lshlrev_b32 v45, 3, v0")
    A("v_cmp_eq_u32 s[52:53], 1, v33")
    A("v_cmp_eq_u32 s[54:55], 2, v33")
    A("v_cmp_eq_u32 s[56:57], 3, v33")
    A("v_lshlrev_b32 v46, 4, v33")
    A("v_lshlrev_b32 v47, 2, v0")
    A(f"s_mov_b32 s30, {hex(f2u(CSC))}")
    A(f"s_mov_b32 s31, {hex(f2u(-CSC))}")
    A("s_lshl_b32 s29, s2, 10")
    A(f"s_add_u32 s29, s29, {WS_P1}")
    A("s_lshl_b32 s32, s21, 13")
    A(f"s_add_u32 s32, s32, {WS_P1}")
    A("s_lshl_b32 s35, 1, s22")
    A("s_xor_b32 s35, s35, 0xff")
    A("s_waitcnt vmcnt(0)")
    A("s_barrier")
    if prio: A("s_setprio 3")
    ST(4)
    for w in range(4):
        A(f"ds_read_b32 v{80+w}, v44 offset:{L_ML+32*w+16}")
    for w in range(4):
        A(f"ds_read_b128 v[{64+4*w}:{64+4*w+3}], v44 offset:{L_ML+32*w}")
    for w in range(4):
        A(f"ds_read_b64 v[{84+2*w}:{84+2*w+1}], v45 offset:{L_PART+512*w}")
    A("s_waitcnt lgkmcnt(8)")
    A("v_max3_f32 v92, v80, v81, v82")
    A("v_max_f32 v92, v92, v83")
    A("v_mul_f32 v93, s31, v92")
    for w in range(4):
        A(f"v_fma_f32 v{80+w}, v{80+w}, s30, v93")
    for w in range(4):
        A(f"v_exp_f32 v{80+w}, v{80+w}")
    A("s_waitcnt lgkmcnt(4)")
    for w in range(4):
        A(f"v_add_f32 v{64+4*w}, v{64+4*w}, v{64+4*w+1}")
        A(f"v_add_f32 v{64+4*w+2}, v{64+4*w+2}, v{64+4*w+3}")
    for w in range(4):
        A(f"v_add_f32 v{64+4*w}, v{64+4*w}, v{64+4*w+2}")
    A("v_mul_f32 v94, v64, v80")
    for w in range(1, 4):
        A(f"v_fmac_f32 v94, v{64+4*w}, v{80+w}")
    A("s_waitcnt lgkmcnt(0)")
    A("v_rcp_f32 v95, v94")
    A("v_log_f32 v96, v94")
    A("v_mul_f32 v98, v84, v80")
    A("v_mul_f32 v99, v85, v80")
    for w in range(1, 4):
        A(f"v_fmac_f32 v98, v{84+2*w}, v{80+w}")
        A(f"v_fmac_f32 v99, v{85+2*w}, v{80+w}")
    A("v_sub_f32 v96, v96, v93")
    A("v_mul_f32 v98, v98, v95")
    A("v_mul_f32 v99, v99, v95")
    A(f"v_mov_b32 v51, v{hT}")
    A("v_mov_b32 v50, v96")
    A("v_mov_b32 v48, v98"); A("v_mov_b32 v49, v99")
    A("buffer_store_dwordx4 v[48:51], v35, s[12:15], s29 offen sc1")
    A("v_mov_b32 v97, 1.0")
    def chk1(r): A(f"v_cmp_eq_u32 vcc, v{r+3}, v{hT}")
    def val1(r):
        A(f"v_max_f32 v100, v96, v{r+2}")
        A(f"v_sub_f32 v101, v96, v100")
        A(f"v_sub_f32 v102, v{r+2}, v100")
        A("v_exp_f32 v101, v101")
        A("v_exp_f32 v102, v102")
        A("v_mov_b32 v96, v100")
        A("v_mul_f32 v98, v98, v101")
        A("v_mul_f32 v99, v99, v101")
        A("v_fma_f32 v97, v97, v101, v102")
        A(f"v_fmac_f32 v98, v{r}, v102")
        A(f"v_fmac_f32 v99, v{r+1}, v102")
    engine("L_e1", 8, E1, 64, "v35", "s32", 10, chk1, val1, "s35")
    ST(5)
    A("v_rcp_f32 v97, v97")
    A("s_nop 0")
    A("v_mul_f32 v98, v98, v97")
    A("v_mul_f32 v99, v99, v97")
    A("v_cvt_pk_bf16_f32 v98, v98, v99")
    A(f"ds_write_b32 v47, v98 offset:{L_O}")
    A("s_lshl_b32 s29, s21, 12")
    A("s_lshl_b32 s30, s22, 9")
    A("s_add_u32 s29, s29, s30")
    A(f"s_add_u32 s29, s29, {WS_P2}")
    A("v_lshlrev_b32 v45, 3, v0")
    A("s_waitcnt lgkmcnt(0)")
    hA2, hD2 = 104, 128
    for sx in range(4):
        A(f"ds_read_b128 v[{hA2+4*sx}:{hA2+4*sx+3}], v46 offset:{L_O + 64*sx}")
    for sx in range(4):
        A(f"s_waitcnt lgkmcnt({3-sx})")
        for cg in range(4):
            c = "0" if sx == 0 else f"v[{hD2+4*cg}:{hD2+4*cg+3}]"
            A(f"v_mfma_f32_16x16x32_bf16 v[{hD2+4*cg}:{hD2+4*cg+3}], v[{hA2+4*sx}:{hA2+4*sx+3}], v[{hWO+16*cg+4*sx}:{hWO+16*cg+4*sx+3}], {c}")
    A(f"v_mov_b32 v50, v{hT}"); A(f"v_mov_b32 v51, v{hT+1}")
    A("s_nop 5")
    A(f"v_cndmask_b32 v48, v{hD2}, v{hD2+4}, s[52:53]")
    A(f"v_cndmask_b32 v48, v48, v{hD2+8}, s[54:55]")
    A(f"v_cndmask_b32 v48, v48, v{hD2+12}, s[56:57]")
    A("s_nop 1")
    A("v_mov_b32_dpp v49, v48 quad_perm:[1,0,3,2] row_mask:0xf bank_mask:0xf")
    A("s_mov_b32 exec_lo, 0x55555555")
    A("s_mov_b32 exec_hi, 0x55555555")
    A("buffer_store_dwordx4 v[48:51], v45, s[12:15], s29 offen sc1")
    A("s_mov_b64 exec, -1")
    ST(6)
    A("s_and_b32 s29, s21, 7")
    A("s_cmp_lg_u32 s29, s22")
    A("s_cbranch_scc1 L_hend")
    A("v_lshrrev_b32 v45, 3, v0")
    A("v_lshlrev_b32 v45, 12, v45")
    A("v_and_b32 v46, 7, v0")
    A("v_lshl_add_u32 v45, v46, 4, v45")
    A("s_lshl_b32 s32, s21, 7")
    A(f"s_add_u32 s32, s32, {WS_P2}")
    A("v_mov_b32 v52, 0"); A("v_mov_b32 v53, 0")
    def chk2(r): A(f"v_cmp_eq_u64 vcc, v[{r+2}:{r+3}], v[{hT}:{hT+1}]")
    def val2(r):
        A(f"v_add_f32 v52, v52, v{r}")
        A(f"v_add_f32 v53, v53, v{r+1}")
    engine("L_e2", 4, E2, 224, "v45", "s32", 15, chk2, val2, "15")
    A("v_mov_b32 v48, v52"); A("v_mov_b32 v49, v53")
    allreduce(A, "v_add_f32", 48, 44, rors=(8,))
    allreduce(A, "v_add_f32", 49, 44, rors=(8,))
    for (r, g, x) in ((48, 56, 58), (49, 57, 59)):
        rne_hi(A, r, r)
        A(f"v_mul_f32 v{r}, v{r}, v{g}")
        rne_hi(A, r, r)
        A(f"v_add_f32 v{r}, v{r}, v{x}")
    A("v_cvt_pk_bf16_f32 v48, v48, v49")
    A("s_mov_b32 s8, s50"); A("s_mov_b32 s9, s51"); A("s_mov_b32 s10, 1024"); A("s_mov_b32 s11, 0x20000")
    A("s_lshl_b32 s29, s21, 5")
    A("v_lshlrev_b32 v46, 2, v46")
    A("s_mov_b64 exec, 0xff")
    A("buffer_store_dword v48, v46, s[8:11], s29 offen")
    A("s_cmp_lg_u32 s21, 0")
    A("s_cbranch_scc1 L_hend")
    A("s_mov_b64 exec, 1")
    A(f"buffer_store_dwordx2 v[{hT}:{hT+1}], v36, s[12:15], 0 offen sc1")
    A.lab("L_hend")
    A("s_mov_b64 exec, -1")
    A("s_waitcnt vmcnt(0)")
    if stamp:
        stamp_out(A, 1)
    A.lab("L_end")
    A("s_endpgm")

    head = HDR + f"; @launch grid=(256,1,1) block=({NW*64},1,1) lds={LDS_BYTES}\n" + f""".amdgcn_target "amdgcn-amd-amdhsa--gfx950"
.text
.globl {NAME}_kernel
.p2align 8
.type {NAME}_kernel,@function
{NAME}_kernel:
"""
    foot = f""".section .rodata,"a"
.p2align 6
.amdhsa_kernel {NAME}_kernel
  .amdhsa_next_free_vgpr 256
  .amdhsa_next_free_sgpr 102
  .amdhsa_accum_offset 256
  .amdhsa_group_segment_fixed_size 0
  .amdhsa_kernarg_size 96
  .amdhsa_user_sgpr_count 2
  .amdhsa_user_sgpr_kernarg_segment_ptr 1
  .amdhsa_system_sgpr_workgroup_id_x 1
.end_amdhsa_kernel
"""
    return head + A.text() + foot

def stamp_out(A, helper):
    A("s_memrealtime s[84:85]")
    A("s_waitcnt lgkmcnt(0)")
    A("s_mul_i32 s29, s2, 5")
    A("s_add_u32 s29, s29, s20")
    A("s_lshl_b32 s29, s29, 5")
    A(f"s_add_u32 s29, s29, {WS_DBG}")
    for i in range(8):
        A(f"v_mov_b32 v{8+i}, s{70+2*i}")
    A("v_mov_b32 v16, s29")
    A("s_mov_b64 exec, 1")
    A("global_store_dwordx4 v16, v[8:11], s[24:25]")
    A("global_store_dwordx4 v16, v[12:15], s[24:25] offset:16")
    A("s_waitcnt vmcnt(0)")

if __name__ == "__main__":
    kw = eval("dict(" + (sys.argv[2] if len(sys.argv) > 2 else "") + ")")
    open(sys.argv[1], "w").write(gen(**kw))
```

```python
import sys, math, struct

NAME = "recurrent_scan__mha_block_cached__swiglu_ffn__decode"

HDR = """; Kernarg layout for this problem (96 bytes, ptrs only, base s[0:1]):
"""

def f2u(x):
    return struct.unpack("<I", struct.pack("<f", x))[0]

WS_EPOCH = 0x0
WS_TICK  = 0x1000
WS_QP    = 0x10000
WS_P1    = 0x80000
WS_P2    = 0x100000
WS_FP    = 0x140000
WS_DBG   = 0x180000
WS_S1    = 0x1A0000
WS_SIZE  = 0x200000

L_XN = 0
L_Q  = 2048
L_PART = 2304
L_ML = 4352
L_H  = 4480
L_O  = 4608
L_TK = 5120
L_PROG = 5888
L_FT = 6144
L_W = 8192
W_RS = 144
LDS_BYTES = 8192 + 128 * 144

DEAD = 0x10000000
OOBV = 0x7FFFFFF0

SCALE = 128 ** -0.5
LOG2E = 1.4426950408889634
CSC = SCALE * LOG2E

class Em:
    def __init__(self):
        self.L = []
        self.vm = []
    def __call__(self, s):
        self.L.append(s)
    def lab(self, s):
        self.L.append(s + ":")
    def c(self, s):
        self.L.append("; " + s)
    def vmem(self, s, tag):
        self.L.append(s); self.vm.append(tag)
    def wait_tag(self, tag):
        idx = max(i for i, t in enumerate(self.vm) if t == tag)
        n = len(self.vm) - 1 - idx
        assert n <= 63, n
        self.L.append(f"s_waitcnt vmcnt({n})")
        return n
    def text(self):
        out = []
        for x in self.L:
            if x.endswith(":") or x.startswith(";"):
                out.append(x)
            else:
                out.append("    " + x)
        return "\n".join(out) + "\n"

def allreduce(A, op, v, t, rors=(8, 4, 2, 1), x16=True, x32=True):
    for r in rors:
        A("s_nop 1")
        A(f"{op}_dpp v{v}, v{v}, v{v} row_ror:{r} row_mask:0xf bank_mask:0xf")
    if x16:
        A(f"v_mov_b32 v{t}, v{v}")
        A("s_nop 1")
        A(f"v_permlane16_swap_b32 v{v}, v{t}")
        A(f"{op} v{v}, v{v}, v{t}")
    if x32:
        A(f"v_mov_b32 v{t}, v{v}")
        A("s_nop 1")
        A(f"v_permlane32_swap_b32 v{v}, v{t}")
        A(f"{op} v{v}, v{v}, v{t}")

def rne_hi(A, dst, src):
    A(f"v_cvt_pk_bf16_f32 v{dst}, v{src}, v{src}")
    A(f"v_and_b32 v{dst}, 0xffff0000, v{dst}")

def silu(A, dst, src, t):
    A(f"v_mul_f32 v{t}, {hex(f2u(-LOG2E))}, v{src}")
    A(f"v_exp_f32 v{t}, v{t}")
    A("s_nop 0")
    A(f"v_add_f32 v{t}, 1.0, v{t}")
    A(f"v_rcp_f32 v{t}, v{t}")
    A("s_nop 0")
    A(f"v_mul_f32 v{dst}, v{src}, v{t}")

def gen(R=6, F=2, NS=58, HELPER=0, POLL_LIMIT=400000, dbg=False, nt_w="nt", stamp=False, prio=True,
        ffn=1, ffn_nt="nt", ffn_comp=True, ffn_s1=True, ffn_s2=True, gsleep=8, gexp=False,
        LEAD=2, wq_on=True, wo_on=True, psleep=2, cheapq=False, E1=4, E2=4, kpol="nt", vpol="nt", s1sleep=8, early_fp=False, s1pub=True, s1poll=True, fppub=True, s1comp=True, s2on=True, s2lvl=0, qsleep0=0, qsleep=0):
    A = Em()
    NW = 5
    WSTREAM = 32
    NI = 2048
    assert F == 2
    A("s_cmp_ge_u32 s2, 256")
    A("s_cbranch_scc1 L_end")
    A("v_lshrrev_b32 v1, 6, v0")
    A("v_and_b32 v0, 63, v0")
    A("s_load_dwordx2 s[24:25], s[0:1], 88")
    A("v_readfirstlane_b32 s20, v1")
    A("s_lshr_b32 s21, s2, 3")
    A("s_and_b32 s22, s2, 7")
    def ST(i):
        if stamp: A(f"s_memrealtime s[{70+2*i}:{71+2*i}]")
    if stamp:
        for i in range(8): A(f"s_mov_b32 s{70+2*i}, 0")
    ST(0)
    A(f"s_cmp_eq_u32 s20, {HELPER}")
    A("s_cbranch_scc1 L_helper")

    A("s_load_dwordx4 s[4:7], s[0:1], 8")
    if prio: A("s_setprio 1")
    if HELPER == 0:
        A("s_sub_u32 s23, s20, 1")
    else:
        A("s_mov_b32 s23, s20")
    vL = 0
    vKA, vVA, vCTR, vTICK = 2, 3, 4, 5
    vM = 6
    vO = 12
    vS = 16
    vm, vl = 10, 11
    vT, vU, vNM, vAL = 20, 21, 22, 23
    vP = 24
    vA = 28
    vQ = 44
    vRING = 64
    def kreg(k, u): return vRING + k * 32 + u * 4
    def vreg(k, u): return vRING + k * 32 + 16 + u * 4
    assert vRING + R * 32 <= 256
    sOFF = 40
    A("v_and_b32 v20, 15, v0")
    A("v_lshrrev_b32 v21, 4, v0")
    A("v_and_b32 v22, 3, v20")
    A("v_lshlrev_b32 v22, 2, v22")
    A("v_lshrrev_b32 v23, 2, v20")
    A("v_or_b32 v22, v22, v23")
    A("v_lshlrev_b32 v22, 8, v22")
    A(f"v_lshl_add_u32 v{vKA}, v21, 4, v22")
    A(f"v_lshlrev_b32 v{vVA}, 4, v0")
    A("v_and_b32 v22, 1, v20")
    A("v_mov_b32 v23, 0xffff")
    A("v_mov_b32 v24, 0xffff0000")
    A("v_cmp_eq_u32 vcc, 1, v22")
    A("v_lshrrev_b32 v25, 1, v20")
    A("s_nop 0")
    A("v_cndmask_b32 v23, v23, v24, vcc")
    for d in range(4):
        A(f"v_cmp_eq_u32 vcc, {d}, v25")
        A("s_nop 1")
        A(f"v_cndmask_b32 v{vM+d}, 0, v23, vcc")
    A(f"v_mov_b32 v{vm}, 0xff800000")
    A(f"v_mov_b32 v{vl}, 0")
    for i in range(4): A(f"v_mov_b32 v{vO+i}, 0")
    A(f"s_mov_b32 s30, {hex(f2u(CSC))}")
    A(f"s_mov_b32 s31, {hex(f2u(-CSC))}")
    A("s_lshl_b32 s26, s21, 23")
    A("s_lshl_b32 s27, s22, 2")
    A("s_add_u32 s27, s27, s23")
    A("s_waitcnt lgkmcnt(0)")
    A("s_mov_b32 s8, s4"); A("s_mov_b32 s9, s5"); A(f"s_mov_b32 s10, {hex(DEAD)}"); A("s_mov_b32 s11, 0x20000")
    A("s_mov_b32 s12, s6"); A("s_mov_b32 s13, s7"); A(f"s_mov_b32 s14, {hex(DEAD)}"); A("s_mov_b32 s15, 0x20000")
    if dbg:
        A("s_mov_b32 s16, s24"); A("s_mov_b32 s17, s25"); A("s_mov_b32 s18, 0"); A("s_mov_b32 s19, 0x20000")
    A("s_barrier")

    def static_off(n):
        k = n % R
        A(f"s_add_u32 s29, s27, {32*n}")
        A("s_lshl_b32 s29, s29, 12")
        A(f"s_add_u32 s{sOFF+k}, s29, s26")
    def issueK(n):
        k = n % R
        for u in range(4):
            r = kreg(k, u)
            A.vmem(f"buffer_load_dwordx4 v[{r}:{r+3}], v{vKA}, s[8:11], s{sOFF+k} offen offset:{u*64} {kpol}", ("K", n))
    def issueV(n):
        k = n % R
        for u in range(4):
            r = vreg(k, u)
            A.vmem(f"buffer_load_dwordx4 v[{r}:{r+3}], v{vVA}, s[12:15], s{sOFF+k} offen offset:{u*1024} {vpol}", ("V", n))
    def qk_mfma(n):
        k = n % R
        for u in range(4):
            r = kreg(k, u)
            c = "0" if u == 0 else f"v[{vS}:{vS+3}]"
            A(f"v_mfma_f32_16x16x32_bf16 v[{vS}:{vS+3}], v[{r}:{r+3}], v[{vQ+4*u}:{vQ+4*u+3}], {c}")
    def softmax(n, pad):
        if pad > 0: A(f"s_nop {pad-1}")
        A(f"v_max3_f32 v{vT}, v{vS}, v{vS+1}, v{vS+2}")
        A(f"v_max_f32 v{vT}, v{vT}, v{vS+3}")
        A(f"v_mov_b32 v{vU}, v{vT}")
        A("s_nop 1")
        A(f"v_permlane16_swap_b32 v{vT}, v{vU}")
        A(f"v_max_f32 v{vT}, v{vT}, v{vU}")
        A(f"v_mov_b32 v{vU}, v{vT}")
        A("s_nop 1")
        A(f"v_permlane32_swap_b32 v{vT}, v{vU}")
        A(f"v_max3_f32 v{vT}, v{vT}, v{vU}, v{vm}")
        A(f"v_mul_f32 v{vNM}, s31, v{vT}")
        A(f"v_fma_f32 v{vAL}, v{vm}, s30, v{vNM}")
        for i in range(4):
            A(f"v_fma_f32 v{vP+i}, v{vS+i}, s30, v{vNM}")
        A(f"v_exp_f32 v{vAL}, v{vAL}")
        for i in range(4):
            A(f"v_exp_f32 v{vP+i}, v{vP+i}")
        A(f"v_mov_b32 v{vm}, v{vT}")
        for i in range(4):
            A(f"v_mul_f32 v{vO+i}, v{vO+i}, v{vAL}")
        A(f"v_add_f32 v{vT}, v{vP}, v{vP+1}")
        A(f"v_add_f32 v{vU}, v{vP+2}, v{vP+3}")
        for i in range(4):
            A(f"v_cvt_pk_bf16_f32 v{vP+i}, v{vP+i}, v{vP+i}")
        A(f"v_add_f32 v{vT}, v{vT}, v{vU}")
        A(f"v_fma_f32 v{vl}, v{vl}, v{vAL}, v{vT}")
        for i in range(4):
            for d in range(4):
                A(f"v_and_b32 v{vA+4*i+d}, v{vP+i}, v{vM+d}")
    def pv_mfma(n):
        k = n % R
        for u in range(4):
            r = vreg(k, u)
            A(f"v_mfma_f32_16x16x32_bf16 v[{vO}:{vO+3}], v[{vA+4*u}:{vA+4*u+3}], v[{r}:{r+3}], v[{vO}:{vO+3}]")

    units = []
    def issue_unit(u):
        n = u // 2
        if u % 2 == 0:
            static_off(n); issueK(n)
        else:
            issueV(n)
    def land_unit(u):
        A.wait_tag(("K" if u % 2 == 0 else "V", u // 2))
    for u in range(F): issue_unit(u)
    for u in range(2 * R - F):
        land_unit(u); issue_unit(u + F)
    ST(1)
    A("s_barrier")
    ST(2)
    A("v_lshrrev_b32 v20, 4, v0")
    A("v_lshlrev_b32 v20, 4, v20")
    for s in range(4):
        A(f"ds_read_b128 v[{vQ+4*s}:{vQ+4*s+3}], v20 offset:{L_Q + s*64}")
    A("s_waitcnt lgkmcnt(0)")
    P = 0; I = 2 * R; Ld = 2 * R - F
    def proc_unit(u):
        n = u // 2
        if u % 2 == 0:
            qk_mfma(n); softmax(n, 8)
        else:
            A("s_nop 1")
            pv_mfma(n)
    state_ok = lambda: (P == Ld and P % 2 == 0 and I == P + F)
    steps = 0
    while not state_ok():
        steps += 1
        assert steps < 100
        while P <= I - 2 * R:
            proc_unit(P); P += 1
        if I - Ld < F or True:
            land_unit(Ld); Ld += 1
            issue_unit(I); I += 1
        k = 0
        while P < Ld and k < 2:
            proc_unit(P); P += 1; k += 1
        if P == Ld and P % 2 == 1:
            land_unit(Ld); Ld += 1
            issue_unit(I); I += 1
            proc_unit(P); P += 1
    n0 = P // 2
    assert I == 2 * n0 + 2
    A.c(f"catch-up done: loop starts at item {n0}, slot {n0 % R}")
    ST(3)
    assert n0 + 2 <= NS
    POOL = NI - 32 * NS
    vTKD = 60
    A(f"s_add_u32 s27, s27, {32*(n0+1)}")
    A(f"s_mov_b32 s28, {n0+1}")
    A(f"v_mov_b32 v{vCTR}, {L_TK - 4*(NS - (n0+2))}")
    A(f"v_mov_b32 v{vTICK}, {n0+1}")
    A("s_lshl_b32 s29, s23, 2")
    A(f"s_add_u32 s29, s29, {L_PROG}")
    A("v_mov_b32 v1, s29")
    A(f"s_add_u32 s35, s23, {32*NS}")
    if dbg:
        A("s_mov_b32 s60, 0"); A("s_mov_b32 s61, 0")
    A.lab("L_loop")
    spins = []
    for kk in range(R):
        n = n0 + kk
        k = n % R; k2 = (n + 1) % R
        A.c(f"--- item slot {k}")
        A(f"s_cmp_ge_u32 s{sOFF+k}, {hex(DEAD)}")
        A("s_cbranch_scc1 L_fin")
        A(f"s_cmp_lt_u32 s28, {NS}")
        A(f"s_cbranch_scc1 L_stat{kk}")
        A("s_waitcnt lgkmcnt(0)")
        A(f"v_readfirstlane_b32 s29, v{vTKD}")
        A("s_cmp_eq_u32 s29, -1")
        A(f"s_cbranch_scc1 L_spin{kk}")
        A.lab(f"L_back{kk}")
        A("s_add_u32 s27, s29, s35")
        A.lab(f"L_stat{kk}")
        A("s_lshl_b32 s33, s27, 12")
        A("s_add_u32 s33, s33, s26")
        A(f"s_cmp_lt_u32 s27, {NI}")
        A(f"s_cselect_b32 s{sOFF+k2}, s33, {hex(DEAD)}")
        if dbg:
            A("s_cselect_b32 s62, s27, 0")
            A("s_cselect_b32 s63, 1, 0")
            A("s_add_u32 s60, s60, s62")
            A("s_add_u32 s61, s61, s63")
        A("s_add_u32 s27, s27, 32")
        A("s_add_u32 s28, s28, 1")
        A("s_waitcnt vmcnt(4)")
        for u in range(4):
            r = kreg(k2, u)
            A(f"buffer_load_dwordx4 v[{r}:{r+3}], v{vKA}, s[8:11], s{sOFF+k2} offen offset:{u*64} {kpol}")
        A(f"ds_write_b32 v1, v{vTICK}")
        A(f"ds_read_b32 v{vTKD}, v{vCTR}")
        qk_mfma(n)
        A(f"v_add_u32 v{vTICK}, 1, v{vTICK}")
        A(f"v_add_u32 v{vCTR}, 4, v{vCTR}")
        softmax(n, 6)
        A("s_waitcnt vmcnt(4)")
        for u in range(4):
            r = vreg(k2, u)
            A(f"buffer_load_dwordx4 v[{r}:{r+3}], v{vVA}, s[12:15], s{sOFF+k2} offen offset:{u*1024} {vpol}")
        pv_mfma(n)
        spins.append(kk)
    A("s_branch L_loop")
    for kk in spins:
        A.lab(f"L_spin{kk}")
        A(f"s_mov_b32 s34, {POLL_LIMIT}")
        A(f"v_add_u32 v{vT}, -4, v{vCTR}")
        A.lab(f"L_spin{kk}_l")
        A(f"ds_read_b32 v{vTKD}, v{vT}")
        A("s_waitcnt lgkmcnt(0)")
        A(f"v_readfirstlane_b32 s29, v{vTKD}")
        A("s_cmp_lg_u32 s29, -1")
        A(f"s_cbranch_scc1 L_back{kk}")
        A("s_sleep 1")
        A("s_sub_u32 s34, s34, 1")
        A("s_cmp_lg_u32 s34, 0")
        A(f"s_cbranch_scc1 L_spin{kk}_l")
        A(f"s_mov_b32 s29, {POOL}")
        A(f"s_branch L_back{kk}")
    A.lab("L_fin")
    A("s_nop 7")
    A("v_lshrrev_b32 v20, 4, v0")
    A("v_and_b32 v21, 15, v0")
    A("s_lshl_b32 s29, s23, 5")
    A(f"s_add_u32 s29, s29, {L_ML}")
    A("v_lshlrev_b32 v22, 2, v20")
    A("v_add_u32 v22, s29, v22")
    A(f"ds_write_b32 v22, v{vl}")
    A("v_mov_b32 v22, s29")
    A(f"ds_write_b32 v22, v{vm} offset:16")
    A("s_lshl_b32 s29, s23, 9")
    A(f"s_add_u32 s29, s29, {L_PART}")
    A("v_lshlrev_b32 v22, 5, v21")
    A("v_lshl_add_u32 v22, v20, 4, v22")
    A("v_add_u32 v22, s29, v22")
    A("s_mov_b32 exec_hi, 0")
    A(f"ds_write_b128 v22, v[{vO}:{vO+3}]")
    A("s_mov_b32 exec_hi, -1")
    ST(4)
    A("s_waitcnt lgkmcnt(0)")
    A("s_barrier")
    ST(5)
    A("s_waitcnt vmcnt(0)")
    if dbg:
        A("s_lshl_b32 s29, s2, 2")
        A("s_add_u32 s29, s29, s23")
        A("s_lshl_b32 s29, s29, 3")
        A(f"s_add_u32 s29, s29, {WS_DBG + 0x10000}")
        A("v_mov_b32 v8, s60"); A("v_mov_b32 v9, s61"); A("v_mov_b32 v12, 0")
        A(f"s_mov_b32 s18, {hex(WS_SIZE)}")
        A("s_mov_b64 exec, 1")
        A("buffer_store_dwordx2 v[8:9], v12, s[16:19], s29 offen")
        A("s_waitcnt vmcnt(0)")
    if stamp:
        stamp_out(A, 0)
    A("s_endpgm")

    A.lab("L_helper")
    A.vm = []
    A("s_load_dwordx2 s[4:5], s[0:1], 0")
    A("s_load_dwordx4 s[36:39], s[0:1], 24")
    A("s_load_dwordx4 s[44:47], s[0:1], 48")
    A("s_load_dwordx4 s[48:51], s[0:1], 64")
    if prio: A("s_setprio 3")
    hE = 2
    hT = 4
    hX = 8
    hF = 12
    hW = 64
    hM = 20
    hD = 28
    A("v_and_b32 v32, 15, v0")
    A("v_lshrrev_b32 v33, 4, v0")
    A("s_lshl_b32 s29, s22, 19")
    A("s_lshl_b32 s30, s21, 8")
    A("s_add_u32 s29, s29, s30")
    A("v_lshlrev_b32 v34, 17, v33")
    A("v_lshl_add_u32 v34, v32, 4, v34")
    A("v_add_u32 v34, s29, v34")
    A("v_lshlrev_b32 v35, 4, v0")
    A("v_mov_b32 v36, 0")
    A("s_waitcnt lgkmcnt(0)")
    A("s_mov_b32 s12, s24"); A("s_mov_b32 s13, s25"); A(f"s_mov_b32 s14, {hex(WS_SIZE)}"); A("s_mov_b32 s15, 0x20000")
    A("s_mov_b32 s8, s4"); A("s_mov_b32 s9, s5"); A("s_mov_b32 s10, 1024"); A("s_mov_b32 s11, 0x20000")
    A("s_mov_b32 s16, s36"); A("s_mov_b32 s17, s37"); A(f"s_mov_b32 s18, {512*8192}"); A("s_mov_b32 s19, 0x20000")
    A.vmem(f"buffer_load_dwordx4 v[{hX}:{hX+3}], v35, s[8:11], 0 offen", "x")
    A.vmem(f"buffer_load_dwordx2 v[{hE}:{hE+1}], v36, s[12:15], 0 offen sc1", "E")
    for i in range(16):
        A(f"s_mov_b32 s29, {i*8192}")
        if wq_on or i == 0: A.vmem(f"buffer_load_dwordx4 v[{hW+4*i}:{hW+4*i+3}], v34, s[16:19], s29 offen {nt_w}", "wq")
    A("s_barrier")
    A("s_cmp_lg_u32 s22, 0")
    A("s_cbranch_scc1 L_nozero")
    A("s_lshl_b32 s29, s21, 7")
    A(f"s_add_u32 s29, s29, {WS_TICK}")
    A("s_mov_b64 exec, 1")
    A("buffer_store_dword v36, v36, s[12:15], s29 offen sc1")
    A("s_mov_b64 exec, -1")
    A.lab("L_nozero")
    A("v_lshlrev_b32 v37, 2, v0")
    A("v_mov_b32 v38, -1")
    for q in range(3):
        A(f"ds_write_b32 v37, v38 offset:{L_TK + 256*q}")
    A(f"ds_write_b32 v37, v36 offset:{L_PROG}")
    A("v_and_b32 v37, 1, v32")
    A("v_mov_b32 v38, 0xffff")
    A("v_mov_b32 v39, 0xffff0000")
    A("v_cmp_eq_u32 vcc, 1, v37")
    A("v_lshrrev_b32 v40, 1, v32")
    A("v_and_b32 v41, 3, v40")
    A("v_cndmask_b32 v38, v38, v39, vcc")
    for d in range(4):
        A(f"v_cmp_eq_u32 vcc, {d}, v40")
        A("s_nop 1")
        A(f"v_cndmask_b32 v{hM+d}, 0, v38, vcc")
        A(f"v_cmp_eq_u32 vcc, {d}, v41")
        A("s_nop 1")
        A(f"v_cndmask_b32 v{hM+4+d}, 0, v38, vcc")
    ST(1)
    A(f"s_waitcnt vmcnt({16 if wq_on else 1})")
    for q in range(4):
        A(f"v_lshlrev_b32 v{hF+2*q}, 16, v{hX+q}")
        A(f"v_and_b32 v{hF+2*q+1}, 0xffff0000, v{hX+q}")
    A(f"v_add_co_u32 v{hT}, vcc, 1, v{hE}")
    A("s_nop 1")
    A(f"v_addc_co_u32 v{hT+1}, vcc, 0, v{hE+1}, vcc")
    A(f"v_add_f32 v42, v{hF}, v{hF+1}")
    for q in range(2, 8):
        A(f"v_add_f32 v42, v42, v{hF+q}")
    allreduce(A, "v_add_f32", 42, 43)
    A(f"v_mul_f32 v42, {hex(f2u(1/512))}, v42")
    A(f"v_sub_f32 v44, v{hF}, v42")
    A("v_mul_f32 v45, v44, v44")
    for q in range(1, 8):
        A(f"v_sub_f32 v44, v{hF+q}, v42")
        A("v_fmac_f32 v45, v44, v44")
    allreduce(A, "v_add_f32", 45, 43)
    A(f"v_mul_f32 v45, {hex(f2u(1/512))}, v45")
    rne_hi(A, 42, 42)
    rne_hi(A, 45, 45)
    A(f"v_add_f32 v45, {hex(f2u(1e-5))}, v45")
    rne_hi(A, 45, 45)
    A("v_sqrt_f32 v45, v45")
    A("s_nop 0")
    rne_hi(A, 45, 45)
    A("v_rcp_f32 v46, v45")
    for q in range(8):
        A(f"v_sub_f32 v{hF+q}, v{hF+q}, v42")
        rne_hi(A, hF + q, hF + q)
        A(f"v_mul_f32 v44, v{hF+q}, v46")
        A(f"v_fma_f32 v47, -v44, v45, v{hF+q}")
        A(f"v_fma_f32 v44, v47, v46, v44")
        rne_hi(A, hF + q, 44)
    A("v_lshlrev_b32 v44, 5, v0")
    A(f"ds_write_b128 v44, v[{hF}:{hF+3}] offset:{L_XN}")
    A(f"ds_write_b128 v44, v[{hF+4}:{hF+7}] offset:{L_XN+16}")
    A("s_lshl_b32 s29, s22, 8")
    A("v_lshlrev_b32 v44, 6, v33")
    A("v_add_u32 v44, s29, v44")
    A("s_waitcnt lgkmcnt(0)")
    hXA = 128
    for q in range(4):
        A(f"ds_read_b128 v[{hXA+4*q}:{hXA+4*q+3}], v44 offset:{L_XN+16*q}")
    A("s_waitcnt lgkmcnt(0)")
    for i in range(16):
        A(f"v_cvt_pk_bf16_f32 v{hXA+i}, v{hXA+i}, v{hXA+i}")
    A("s_waitcnt vmcnt(0)")
    ST(2)
    hA = 144
    for i in range(16):
        a = hA + 4 * (i & 1)
        for d in range(4):
            A(f"v_and_b32 v{a+d}, v{hXA+i}, v{hM+d}")
        A("s_nop 1")
        c = "0" if i == 0 else f"v[{hD}:{hD+3}]"
        A(f"v_mfma_f32_16x16x32_bf16 v[{hD}:{hD+3}], v[{a}:{a+3}], v[{hW+4*i}:{hW+4*i+3}], {c}")
    A("s_lshl_b32 s29, s2, 10")
    A(f"s_add_u32 s29, s29, {WS_QP}")
    A("v_and_b32 v44, 1, v33")
    A("v_lshlrev_b32 v44, 5, v44")
    A("v_lshrrev_b32 v45, 1, v33")
    A("v_lshl_add_u32 v44, v45, 4, v44")
    A("v_lshl_add_u32 v6, v32, 6, v44")
    A("s_nop 3")
    def publish1(dreg, vaddr, soff):
        A(f"v_permlane32_swap_b32 v{dreg}, v{dreg+2}")
        A(f"v_permlane32_swap_b32 v{dreg+1}, v{dreg+3}")
        A(f"v_mov_b32 v50, v{hT}"); A(f"v_mov_b32 v51, v{hT+1}")
        A(f"v_mov_b32 v48, v{dreg}"); A(f"v_mov_b32 v49, v{dreg+1}")
        A(f"buffer_store_dwordx4 v[48:51], v{vaddr}, s[12:15], {soff} offen sc1")
    publish1(hD, 6, "s29")
    def poll(label, loads, nregs_tagpairs, extra_ok=None, sleep=0):
        A(f"s_mov_b32 s34, {POLL_LIMIT}")
        A.lab(label)
        loads()
        A("s_waitcnt vmcnt(0)")
        A("s_mov_b64 s[30:31], -1")
        for idx, tp in enumerate(nregs_tagpairs):
            A(f"v_cmp_eq_u64 vcc, v[{tp}:{tp+1}], v[{hT}:{hT+1}]")
            if extra_ok and idx in extra_ok:
                A(f"s_or_b64 vcc, vcc, {extra_ok[idx]}")
            A("s_and_b64 s[30:31], s[30:31], vcc")
        A("s_cmp_eq_u64 s[30:31], -1")
        A(f"s_cbranch_scc1 {label}_ok")
        if sleep: A(f"s_sleep {sleep}")
        A("s_sub_u32 s34, s34, 1")
        A("s_cmp_lg_u32 s34, 0")
        A(f"s_cbranch_scc1 {label}")
        A.lab(label + "_ok")
    hG = 64
    A("s_lshl_b32 s29, s21, 13")
    A(f"s_add_u32 s29, s29, {WS_QP}")
    def qloads():
        for jj in range(8):
            A(f"s_add_u32 s33, s29, {jj*1024}")
            A(f"buffer_load_dwordx4 v[{hG+4*jj}:{hG+4*jj+3}], v35, s[12:15], s33 offen sc1")
    if cheapq:
        A("v_lshlrev_b32 v45, 10, v0")
        A("v_add_u32 v45, 1008, v45")
        A(f"v_mov_b32 v46, {hex(OOBV)}")
        A("v_cmp_gt_u32 vcc, 8, v0")
        A("s_nop 1")
        A("v_cndmask_b32 v45, v46, v45, vcc")
        A("s_mov_b32 s52, 0xffffff00"); A("s_mov_b32 s53, -1")
        def qpre():
            A(f"buffer_load_dwordx4 v[{hG}:{hG+3}], v45, s[12:15], s29 offen sc1")
        poll("L_pq0", qpre, [hG + 2], extra_ok={0: "s[52:53]"}, sleep=psleep)
    if qsleep0: A(f"s_sleep {qsleep0}")
    poll("L_pq", qloads, [hG + 4 * jj + 2 for jj in range(8)], sleep=qsleep)
    A(f"v_add_f32 v44, v{hG}, v{hG+4}")
    A(f"v_add_f32 v45, v{hG+1}, v{hG+5}")
    for jj in range(2, 8):
        A(f"v_add_f32 v44, v44, v{hG+4*jj}")
        A(f"v_add_f32 v45, v45, v{hG+4*jj+1}")
    A("v_cvt_pk_bf16_f32 v44, v44, v45")
    A("v_lshlrev_b32 v45, 2, v0")
    A(f"ds_write_b32 v45, v44 offset:{L_Q}")
    A("s_waitcnt lgkmcnt(0)")
    ST(3)
    A("s_barrier")
    if prio: A("s_setprio 0")

    A("s_and_b32 s29, s2, 7")
    A("s_lshl_b32 s29, s29, 1")
    A("s_bfe_u32 s30, s2, 0x10003")
    A("s_or_b32 s58, s29, s30")
    A("s_lshr_b32 s59, s2, 4")
    A("s_cmp_ge_u32 s58, 11")
    A("s_cbranch_scc1 L_nos1")
    if not ffn: A("s_branch L_nos1")
    A("s_mov_b32 s8, s44"); A("s_mov_b32 s9, s45"); A(f"s_mov_b32 s10, {512*2752}"); A("s_mov_b32 s11, 0x20000")
    A("s_mov_b32 s16, s46"); A("s_mov_b32 s17, s47"); A(f"s_mov_b32 s18, {512*2752}"); A("s_mov_b32 s19, 0x20000")
    A("s_and_b32 s31, s59, 1")
    A("s_lshr_b32 s30, s59, 1")
    A("s_lshl_b32 s30, s30, 6")
    A("s_add_u32 s30, s30, s31")
    A("v_lshlrev_b32 v44, 4, v33")
    A("v_add_u32 v44, s30, v44")
    A("v_lshlrev_b32 v47, 2, v44")
    A("v_mul_u32_u24 v44, 2752, v44")
    A("v_lshl_add_u32 v44, v32, 4, v44")
    A("s_lshl_b32 s33, s58, 7")
    A("s_lshl_b32 s34, s31, 5")
    A("s_sub_u32 s33, s33, s34")
    A("v_lshlrev_b32 v45, 3, v32")
    A("v_add_u32 v45, s33, v45")
    A("s_lshl_b32 s33, s33, 1")
    A("v_add_u32 v44, s33, v44")
    A(f"v_mov_b32 v46, {hex(OOBV)}")
    A("v_cmp_gt_u32 vcc, 1376, v45")
    A("s_nop 1")
    A("v_cndmask_b32 v44, v46, v44, vcc")
    for i in range(8):
        A(f"s_mov_b32 s33, {2*i*2752}")
        if ffn_s1:
            A(f"buffer_load_dwordx4 v[{64+4*i}:{64+4*i+3}], v44, s[8:11], s33 offen {ffn_nt}")
            A(f"buffer_load_dwordx4 v[{96+4*i}:{96+4*i+3}], v44, s[16:19], s33 offen {ffn_nt}")
    for q in range(4):
        A(f"ds_read2_b32 v[{128+2*q}:{129+2*q}], v47 offset0:{L_XN//4 + 4*q} offset1:{L_XN//4 + 4*q + 2}")
    for d in range(4):
        A(f"v_xor_b32 v{hM+4+d}, v{hM+4+d}, v{hM+d}")
    A("v_and_b32 v45, 1, v33")
    A("v_lshlrev_b32 v45, 5, v45")
    A("v_lshrrev_b32 v46, 1, v33")
    A("v_lshl_add_u32 v45, v46, 4, v45")
    A("v_and_b32 v46, 3, v32")
    A("v_lshl_add_u32 v45, v46, 6, v45")
    A("v_lshrrev_b32 v46, 2, v32")
    A("v_lshl_add_u32 v45, v46, 9, v45")
    A("s_mul_i32 s29, s59, 22528")
    A("s_lshl_b32 s30, s58, 11")
    A("s_add_u32 s29, s29, s30")
    A(f"s_add_u32 s29, s29, {WS_S1}")
    A("s_waitcnt lgkmcnt(0)")
    for i in range(8):
        A(f"v_cvt_pk_bf16_f32 v{128+i}, v{128+i}, v{128+i}")
    A("s_waitcnt vmcnt(0)")
    for i in range(8):
        for mtx in range(2):
            a = hA + 4 * mtx
            for d in range(4):
                A(f"v_and_b32 v{a+d}, v{128+i}, v{hM+4*mtx+d}")
            A("s_nop 1")
            c = "0" if (i == 0 and mtx == 0) else f"v[{hD}:{hD+3}]"
            w = 64 + 32 * mtx + 4 * i
            A(f"v_mfma_f32_16x16x32_bf16 v[{hD}:{hD+3}], v[{a}:{a+3}], v[{w}:{w+3}], {c}")
    A(f"v_mov_b32 v50, v{hT}"); A(f"v_mov_b32 v51, v{hT+1}")
    A(f"v_mov_b32 v54, v{hT}"); A(f"v_mov_b32 v55, v{hT+1}")
    A("s_nop 7")
    A(f"v_permlane32_swap_b32 v{hD}, v{hD+1}")
    A(f"v_permlane32_swap_b32 v{hD+2}, v{hD+3}")
    A("s_nop 1")
    A(f"v_mov_b32 v48, v{hD}"); A(f"v_mov_b32 v49, v{hD+1}")
    A(f"v_mov_b32 v52, v{hD+2}"); A(f"v_mov_b32 v53, v{hD+3}")
    if s1pub:
        A("buffer_store_dwordx4 v[48:51], v45, s[12:15], s29 offen sc1")
        A("buffer_store_dwordx4 v[52:55], v45, s[12:15], s29 offen offset:256 sc1")
    A.lab("L_nos1")

    A("s_mov_b32 s16, s38"); A("s_mov_b32 s17, s39"); A(f"s_mov_b32 s18, {4096*1024}"); A("s_mov_b32 s19, 0x20000")
    hWO = 160
    A("v_lshrrev_b32 v44, 3, v0")
    A("v_lshlrev_b32 v44, 14, v44")
    A("v_and_b32 v45, 7, v0")
    A("v_lshl_add_u32 v44, v45, 4, v44")
    A("s_lshl_b32 s29, s21, 17")
    A("s_lshl_b32 s30, s22, 7")
    A("s_add_u32 s29, s29, s30")
    for i in range(16):
        A(f"s_add_u32 s33, s29, {i*1024}")
        if wo_on: A(f"buffer_load_dwordx4 v[{hWO+4*i}:{hWO+4*i+3}], v44, s[16:19], s33 offen {nt_w}")
    A("v_lshrrev_b32 v44, 3, v0")
    A(f"v_mul_u32_u24 v44, {16*W_RS}, v44")
    A("v_and_b32 v45, 7, v0")
    A("v_lshl_add_u32 v44, v45, 4, v44")
    A("s_waitcnt vmcnt(0)")
    for i in range(16):
        A(f"ds_write_b128 v44, v[{hWO+4*i}:{hWO+4*i+3}] offset:{L_W + i*W_RS}")
        if i % 8 == 7: A("s_waitcnt lgkmcnt(0)")
    A(f"v_mul_u32_u24 v44, {8*W_RS}, v33")
    A("v_lshl_add_u32 v44, v32, 1, v44")
    for cg in range(4):
        for sx in range(4):
            for e in range(8):
                A(f"ds_read_u16 v{64+e}, v44 offset:{L_W + (32*sx + e)*W_RS + 32*cg}")
            A("s_waitcnt lgkmcnt(0)")
            for d in range(4):
                A(f"v_lshl_or_b32 v{hWO + 16*cg + 4*sx + d}, v{64+2*d+1}, 16, v{64+2*d}")

    A("s_cmp_lt_u32 s58, 11")
    A("s_cbranch_scc1 L_noffn")
    A("s_sub_u32 s35, s58, 11")
    A("s_lshl_b32 s35, s35, 4")
    A("s_add_u32 s35, s35, s59")
    A("s_cmp_ge_u32 s35, 43")
    A("s_cbranch_scc1 L_noffn")
    if not ffn or not s2on: A("s_branch L_noffn")
    hAG = 12
    hAU = 56
    def wait_prog(label, level):
        A(f"v_mov_b32 v46, {L_PROG}")
        A(f"s_mov_b32 s34, {POLL_LIMIT}")
        A.lab(label)
        A("ds_read_b128 v[64:67], v46")
        A("s_waitcnt lgkmcnt(0)")
        A("v_max3_u32 v64, v64, v65, v66")
        A("v_max_u32 v64, v64, v67")
        A("s_nop 0")
        A("v_readfirstlane_b32 s29, v64")
        A(f"s_cmp_ge_u32 s29, {level}")
        A(f"s_cbranch_scc1 {label}_ok")
        A("s_sleep 8")
        A("s_sub_u32 s34, s34, 1")
        A("s_cmp_lg_u32 s34, 0")
        A(f"s_cbranch_scc1 {label}")
        A.lab(label + "_ok")
    if s2lvl: wait_prog("L_w2", s2lvl)
    A("v_lshrrev_b32 v44, 5, v0")
    A(f"v_mul_u32_u24 v44, {22528+512}, v44")
    A("v_and_b32 v45, 31, v0")
    A("v_lshl_add_u32 v44, v45, 4, v44")
    A("s_lshl_b32 s29, s35, 9")
    A(f"s_add_u32 s29, s29, {WS_S1}")
    def s1loads():
        for k in range(8):
            A(f"s_add_u32 s33, s29, {2*k*22528}")
            A(f"buffer_load_dwordx4 v[{64+4*k}:{64+4*k+3}], v44, s[12:15], s33 offen sc1")
    if s1poll: poll("L_ps1", s1loads, [64 + 4 * k + 2 for k in range(8)], sleep=s1sleep)
    A("v_add_f32 v12, v64, v68"); A("v_add_f32 v13, v65, v69")
    for k in range(2, 8):
        A(f"v_add_f32 v12, v12, v{64+4*k}"); A(f"v_add_f32 v13, v13, v{64+4*k+1}")
    allreduce(A, "v_add_f32", 12, 46, rors=(), x16=False)
    allreduce(A, "v_add_f32", 13, 46, rors=(), x16=False)
    rne_hi(A, 12, 12)
    silu(A, 12, 12, 46)
    rne_hi(A, 12, 12)
    rne_hi(A, 13, 13)
    A("v_mul_f32 v12, v12, v13")
    rne_hi(A, 12, 12)
    A("v_bfe_u32 v46, v45, 2, 2")
    A("v_lshlrev_b32 v46, 3, v46")
    A("v_bfe_u32 v47, v45, 1, 1")
    A("v_lshl_add_u32 v46, v47, 2, v46")
    A("v_lshrrev_b32 v47, 4, v45")
    A("v_lshl_add_u32 v46, v47, 1, v46")
    A("v_and_b32 v47, 1, v45")
    A("v_add_u32 v46, v46, v47")
    A("v_lshlrev_b32 v45, 2, v46")
    A(f"ds_write_b32 v45, v12 offset:{L_H}")
    A("s_mov_b32 s8, s48"); A("s_mov_b32 s9, s49"); A(f"s_mov_b32 s10, {1376*1024}"); A("s_mov_b32 s11, 0x20000")
    A("s_lshl_b32 s31, s35, 15")
    A(f"v_mov_b32 v47, {L_H}")
    for q in range(8): A(f"v_mov_b32 v{hAU+q}, 0")
    A("s_mov_b32 s32, 4")
    A("s_waitcnt lgkmcnt(0)")
    A.lab("L_f2")
    for i in range(8):
        A(f"s_add_u32 s33, s31, {i*1024}")
        if ffn_s2: A(f"buffer_load_dwordx4 v[{64+4*i}:{64+4*i+3}], v35, s[8:11], s33 offen {ffn_nt}")
    A("ds_read_b128 v[128:131], v47")
    A("ds_read_b128 v[132:135], v47 offset:16")
    A("v_add_u32 v47, 32, v47")
    A(f"s_add_u32 s31, s31, {8*1024}")
    A("s_waitcnt vmcnt(0) lgkmcnt(0)")
    for i in range(8 if ffn_comp else 0):
        for q in range(4):
            r = 64 + 4 * i + q
            A(f"v_lshlrev_b32 v44, 16, v{r}")
            A(f"v_and_b32 v45, 0xffff0000, v{r}")
            A(f"v_fmac_f32 v{hAU+2*q}, v44, v{128+i}")
            A(f"v_fmac_f32 v{hAU+2*q+1}, v45, v{128+i}")
    A("s_sub_u32 s32, s32, 1")
    A("s_cmp_lg_u32 s32, 0")
    A("s_cbranch_scc1 L_f2")
    A("v_lshlrev_b32 v44, 5, v0")
    A(f"ds_write_b128 v44, v[{hAU}:{hAU+3}] offset:{L_FT}")
    A(f"ds_write_b128 v44, v[{hAU+4}:{hAU+7}] offset:{L_FT+16}")
    A("v_lshlrev_b32 v44, 3, v0")
    A("s_waitcnt lgkmcnt(0)")
    for q in range(4):
        A(f"ds_read_b64 v[{64+4*q}:{64+4*q+1}], v44 offset:{L_FT + 512*q}")
        A(f"v_mov_b32 v{64+4*q+2}, v{hT}"); A(f"v_mov_b32 v{64+4*q+3}, v{hT+1}")
    A("s_lshl_b32 s29, s35, 12")
    A(f"s_add_u32 s29, s29, {WS_FP}")
    A("s_waitcnt lgkmcnt(0)")
    for q in range(4 if fppub else 0):
        A(f"buffer_store_dwordx4 v[{64+4*q}:{64+4*q+3}], v35, s[12:15], s29 offen offset:{1024*q} sc1")
    A.lab("L_noffn")

    def emit_fp():
        A("s_and_b32 s29, s21, 7")
        A("s_cmp_lg_u32 s29, s22")
        A("s_cbranch_scc1 L_nocons1")
        hGG = 56
        A("v_lshrrev_b32 v45, 3, v0")
        A("v_lshlrev_b32 v45, 12, v45")
        A("v_and_b32 v46, 7, v0")
        A("v_lshl_add_u32 v45, v46, 4, v45")
        A("s_lshl_b32 s29, s21, 7")
        A(f"s_add_u32 s29, s29, {WS_FP}")
        A(f"v_mov_b32 v47, {hex(OOBV)}")
        A("v_cmp_gt_u32 vcc, 24, v0")
        A("s_nop 1")
        A("v_cndmask_b32 v47, v47, v45, vcc")
        A("s_mov_b32 s52, 0xff000000"); A("s_mov_b32 s53, -1")
        def floads():
            for k in range(6):
                A(f"s_add_u32 s33, s29, {k*8*4096}")
                va = 47 if k == 5 else 45
                A(f"buffer_load_dwordx4 v[{64+4*k}:{64+4*k+3}], v{va}, s[12:15], s33 offen sc1")
        if ffn and not gexp:
            poll("L_pf", floads, [64 + 4 * k + 2 for k in range(6)], extra_ok={5: "s[52:53]"}, sleep=gsleep)
        A("v_add_f32 v56, v64, v68"); A("v_add_f32 v57, v65, v69")
        for k in range(2, 6):
            A(f"v_add_f32 v56, v56, v{64+4*k}"); A(f"v_add_f32 v57, v57, v{64+4*k+1}")
        allreduce(A, "v_add_f32", 56, 44, rors=(8,))
        allreduce(A, "v_add_f32", 57, 44, rors=(8,))
        for r in (56, 57):
            rne_hi(A, r, r)
            silu(A, r, r, 44)
            rne_hi(A, r, r)
        A("s_mov_b32 s8, s4"); A("s_mov_b32 s9, s5"); A("s_mov_b32 s10, 1024"); A("s_mov_b32 s11, 0x20000")
        A("s_lshl_b32 s29, s21, 5")
        A("v_lshlrev_b32 v46, 2, v46")
        A("buffer_load_dword v58, v46, s[8:11], s29 offen")
        A("s_waitcnt vmcnt(0)")
        A("v_and_b32 v59, 0xffff0000, v58")
        A("v_lshlrev_b32 v58, 16, v58")
        A.lab("L_nocons1")
    if early_fp: emit_fp()
    A("s_lshl_b32 s29, s21, 7")
    A(f"s_add_u32 s29, s29, {WS_TICK}")
    A("v_mov_b32 v44, s29")
    A(f"v_mov_b32 v45, {hex(OOBV)}")
    A("v_cmp_eq_u32 vcc, 0, v0")
    A(f"v_mov_b32 v46, {L_PROG}")
    A(f"v_mov_b32 v47, {L_TK}")
    A("v_cndmask_b32 v44, v45, v44, vcc")
    A(f"s_mov_b32 s36, {NS - LEAD}")
    A("s_mov_b32 s37, 0")
    A.lab("L_tk")
    A(f"s_mov_b32 s34, {POLL_LIMIT}")
    A.lab("L_tkw")
    A("ds_read_b128 v[64:67], v46")
    A("s_waitcnt lgkmcnt(0)")
    A("v_max3_u32 v64, v64, v65, v66")
    A("v_max_u32 v64, v64, v67")
    A("s_nop 0")
    A("v_readfirstlane_b32 s29, v64")
    A("s_cmp_ge_u32 s29, s36")
    A("s_cbranch_scc1 L_tkgo")
    A(f"s_sleep {psleep}")
    A("s_sub_u32 s34, s34, 1")
    A("s_cmp_lg_u32 s34, 0")
    A("s_cbranch_scc1 L_tkw")
    A.lab("L_tkgo")
    A("v_mov_b32 v65, 4")
    A("buffer_atomic_add v65, v44, s[12:15], 0 offen sc0 sc1")
    A("s_waitcnt vmcnt(0)")
    A("v_readfirstlane_b32 s29, v65")
    A("s_cmp_lt_u32 s37, 180")
    A(f"s_cselect_b32 s29, s29, {NI - 32*NS}")
    A("v_mov_b32 v65, s29")
    A("ds_write_b32 v47, v65")
    A("v_add_u32 v47, 4, v47")
    A("s_add_u32 s36, s36, 1")
    A("s_add_u32 s37, s37, 1")
    A(f"s_cmp_lt_u32 s29, {NI - 32*NS}")
    A("s_cbranch_scc1 L_tk")

    if not early_fp: emit_fp()

    def engine(label, nitems, nslots, slot0, vaddr, sbase, shift, check, on_valid, smiss_init):
        sM, sC, sT, sO, sN = 60, 61, 62, 63, 34
        sI = 86
        A(f"s_mov_b32 s{sM}, {smiss_init}")
        A(f"s_mov_b32 s{sC}, 0")
        A(f"s_mov_b32 s{sN}, {POLL_LIMIT}")
        def issue(k):
            A(f"s_lshl_b32 s{sT}, -1, s{sC}")
            A(f"s_and_b32 s{sT}, s{sT}, s{sM}")
            A(f"s_cselect_b32 s{sT}, s{sT}, s{sM}")
            A(f"s_ff1_i32_b32 s{sI+k}, s{sT}")
            A(f"s_add_u32 s{sC}, s{sI+k}, 1")
            A(f"s_lshl_b32 s{sO}, s{sI+k}, {shift}")
            A(f"s_add_u32 s{sO}, s{sO}, {sbase}")
            r = slot0 + 4 * k
            A(f"buffer_load_dwordx4 v[{r}:{r+3}], {vaddr}, s[12:15], s{sO} offen sc1")
        for k in range(nslots): issue(k)
        A.lab(label)
        for k in range(nslots):
            r = slot0 + 4 * k
            A(f"s_waitcnt vmcnt({nslots-1})")
            check(r)
            A(f"s_lshl_b32 s{sT}, 1, s{sI+k}")
            A("s_cmp_eq_u64 vcc, -1")
            A(f"s_cselect_b32 s{sT}, s{sT}, 0")
            A(f"s_and_b32 s{sT}, s{sT}, s{sM}")
            A(f"s_cbranch_scc0 {label}_s{k}")
            A(f"s_xor_b32 s{sM}, s{sM}, s{sT}")
            on_valid(r)
            A(f"s_cmp_eq_u32 s{sM}, 0")
            A(f"s_cbranch_scc1 {label}_ok")
            A.lab(f"{label}_s{k}")
            issue(k)
        A(f"s_sub_u32 s{sN}, s{sN}, 1")
        A(f"s_cmp_lg_u32 s{sN}, 0")
        A(f"s_cbranch_scc1 {label}")
        A.lab(label + "_ok")
    A("v_mov_b32 v44, 0")
    A("v_lshlrev_b32 v45, 3, v0")
    A("v_cmp_eq_u32 s[52:53], 1, v33")
    A("v_cmp_eq_u32 s[54:55], 2, v33")
    A("v_cmp_eq_u32 s[56:57], 3, v33")
    A("v_lshlrev_b32 v46, 4, v33")
    A("v_lshlrev_b32 v47, 2, v0")
    A(f"s_mov_b32 s30, {hex(f2u(CSC))}")
    A(f"s_mov_b32 s31, {hex(f2u(-CSC))}")
    A("s_lshl_b32 s29, s2, 10")
    A(f"s_add_u32 s29, s29, {WS_P1}")
    A("s_lshl_b32 s32, s21, 13")
    A(f"s_add_u32 s32, s32, {WS_P1}")
    A("s_lshl_b32 s35, 1, s22")
    A("s_xor_b32 s35, s35, 0xff")
    A("s_waitcnt vmcnt(0)")
    A("s_barrier")
    if prio: A("s_setprio 3")
    ST(4)
    for w in range(4):
        A(f"ds_read_b32 v{80+w}, v44 offset:{L_ML+32*w+16}")
    for w in range(4):
        A(f"ds_read_b128 v[{64+4*w}:{64+4*w+3}], v44 offset:{L_ML+32*w}")
    for w in range(4):
        A(f"ds_read_b64 v[{84+2*w}:{84+2*w+1}], v45 offset:{L_PART+512*w}")
    A("s_waitcnt lgkmcnt(8)")
    A("v_max3_f32 v92, v80, v81, v82")
    A("v_max_f32 v92, v92, v83")
    A("v_mul_f32 v93, s31, v92")
    for w in range(4):
        A(f"v_fma_f32 v{80+w}, v{80+w}, s30, v93")
    for w in range(4):
        A(f"v_exp_f32 v{80+w}, v{80+w}")
    A("s_waitcnt lgkmcnt(4)")
    for w in range(4):
        A(f"v_add_f32 v{64+4*w}, v{64+4*w}, v{64+4*w+1}")
        A(f"v_add_f32 v{64+4*w+2}, v{64+4*w+2}, v{64+4*w+3}")
    for w in range(4):
        A(f"v_add_f32 v{64+4*w}, v{64+4*w}, v{64+4*w+2}")
    A("v_mul_f32 v94, v64, v80")
    for w in range(1, 4):
        A(f"v_fmac_f32 v94, v{64+4*w}, v{80+w}")
    A("s_waitcnt lgkmcnt(0)")
    A("v_rcp_f32 v95, v94")
    A("v_log_f32 v96, v94")
    A("v_mul_f32 v98, v84, v80")
    A("v_mul_f32 v99, v85, v80")
    for w in range(1, 4):
        A(f"v_fmac_f32 v98, v{84+2*w}, v{80+w}")
        A(f"v_fmac_f32 v99, v{85+2*w}, v{80+w}")
    A("v_sub_f32 v96, v96, v93")
    A("v_mul_f32 v98, v98, v95")
    A("v_mul_f32 v99, v99, v95")
    A(f"v_mov_b32 v51, v{hT}")
    A("v_mov_b32 v50, v96")
    A("v_mov_b32 v48, v98"); A("v_mov_b32 v49, v99")
    A("buffer_store_dwordx4 v[48:51], v35, s[12:15], s29 offen sc1")
    A("v_mov_b32 v97, 1.0")
    def chk1(r): A(f"v_cmp_eq_u32 vcc, v{r+3}, v{hT}")
    def val1(r):
        A(f"v_max_f32 v100, v96, v{r+2}")
        A(f"v_sub_f32 v101, v96, v100")
        A(f"v_sub_f32 v102, v{r+2}, v100")
        A("v_exp_f32 v101, v101")
        A("v_exp_f32 v102, v102")
        A("v_mov_b32 v96, v100")
        A("v_mul_f32 v98, v98, v101")
        A("v_mul_f32 v99, v99, v101")
        A("v_fma_f32 v97, v97, v101, v102")
        A(f"v_fmac_f32 v98, v{r}, v102")
        A(f"v_fmac_f32 v99, v{r+1}, v102")
    engine("L_e1", 8, E1, 64, "v35", "s32", 10, chk1, val1, "s35")
    ST(5)
    A("v_rcp_f32 v97, v97")
    A("s_nop 0")
    A("v_mul_f32 v98, v98, v97")
    A("v_mul_f32 v99, v99, v97")
    A("v_cvt_pk_bf16_f32 v98, v98, v99")
    A(f"ds_write_b32 v47, v98 offset:{L_O}")
    A("s_lshl_b32 s29, s21, 12")
    A("s_lshl_b32 s30, s22, 9")
    A("s_add_u32 s29, s29, s30")
    A(f"s_add_u32 s29, s29, {WS_P2}")
    A("v_lshlrev_b32 v45, 3, v0")
    A("s_waitcnt lgkmcnt(0)")
    hA2, hD2 = 104, 128
    for sx in range(4):
        A(f"ds_read_b128 v[{hA2+4*sx}:{hA2+4*sx+3}], v46 offset:{L_O + 64*sx}")
    for sx in range(4):
        A(f"s_waitcnt lgkmcnt({3-sx})")
        for cg in range(4):
            c = "0" if sx == 0 else f"v[{hD2+4*cg}:{hD2+4*cg+3}]"
            A(f"v_mfma_f32_16x16x32_bf16 v[{hD2+4*cg}:{hD2+4*cg+3}], v[{hA2+4*sx}:{hA2+4*sx+3}], v[{hWO+16*cg+4*sx}:{hWO+16*cg+4*sx+3}], {c}")
    A(f"v_mov_b32 v50, v{hT}"); A(f"v_mov_b32 v51, v{hT+1}")
    A("s_nop 5")
    A(f"v_cndmask_b32 v48, v{hD2}, v{hD2+4}, s[52:53]")
    A(f"v_cndmask_b32 v48, v48, v{hD2+8}, s[54:55]")
    A(f"v_cndmask_b32 v48, v48, v{hD2+12}, s[56:57]")
    A("s_nop 1")
    A("v_mov_b32_dpp v49, v48 quad_perm:[1,0,3,2] row_mask:0xf bank_mask:0xf")
    A("s_mov_b32 exec_lo, 0x55555555")
    A("s_mov_b32 exec_hi, 0x55555555")
    A("buffer_store_dwordx4 v[48:51], v45, s[12:15], s29 offen sc1")
    A("s_mov_b64 exec, -1")
    ST(6)
    A("s_and_b32 s29, s21, 7")
    A("s_cmp_lg_u32 s29, s22")
    A("s_cbranch_scc1 L_hend")
    A("v_lshrrev_b32 v45, 3, v0")
    A("v_lshlrev_b32 v45, 12, v45")
    A("v_and_b32 v46, 7, v0")
    A("v_lshl_add_u32 v45, v46, 4, v45")
    A("s_lshl_b32 s32, s21, 7")
    A(f"s_add_u32 s32, s32, {WS_P2}")
    A("v_mov_b32 v52, 0"); A("v_mov_b32 v53, 0")
    def chk2(r): A(f"v_cmp_eq_u64 vcc, v[{r+2}:{r+3}], v[{hT}:{hT+1}]")
    def val2(r):
        A(f"v_add_f32 v52, v52, v{r}")
        A(f"v_add_f32 v53, v53, v{r+1}")
    engine("L_e2", 4, E2, 224, "v45", "s32", 15, chk2, val2, "15")
    A("v_mov_b32 v48, v52"); A("v_mov_b32 v49, v53")
    allreduce(A, "v_add_f32", 48, 44, rors=(8,))
    allreduce(A, "v_add_f32", 49, 44, rors=(8,))
    for (r, g, x) in ((48, 56, 58), (49, 57, 59)):
        rne_hi(A, r, r)
        A(f"v_mul_f32 v{r}, v{r}, v{g}")
        rne_hi(A, r, r)
        A(f"v_add_f32 v{r}, v{r}, v{x}")
    A("v_cvt_pk_bf16_f32 v48, v48, v49")
    A("s_mov_b32 s8, s50"); A("s_mov_b32 s9, s51"); A("s_mov_b32 s10, 1024"); A("s_mov_b32 s11, 0x20000")
    A("s_lshl_b32 s29, s21, 5")
    A("v_lshlrev_b32 v46, 2, v46")
    A("s_mov_b64 exec, 0xff")
    A("buffer_store_dword v48, v46, s[8:11], s29 offen")
    A("s_cmp_lg_u32 s21, 0")
    A("s_cbranch_scc1 L_hend")
    A("s_mov_b64 exec, 1")
    A(f"buffer_store_dwordx2 v[{hT}:{hT+1}], v36, s[12:15], 0 offen sc1")
    A.lab("L_hend")
    A("s_mov_b64 exec, -1")
    A("s_waitcnt vmcnt(0)")
    if stamp:
        stamp_out(A, 1)
    A.lab("L_end")
    A("s_endpgm")

    head = HDR + f"; @launch grid=(256,1,1) block=({NW*64},1,1) lds={LDS_BYTES}\n" + f""".amdgcn_target "amdgcn-amd-amdhsa--gfx950"
.text
.globl {NAME}_kernel
.p2align 8
.type {NAME}_kernel,@function
{NAME}_kernel:
"""
    foot = f""".section .rodata,"a"
.p2align 6
.amdhsa_kernel {NAME}_kernel
  .amdhsa_next_free_vgpr 256
  .amdhsa_next_free_sgpr 102
  .amdhsa_accum_offset 256
  .amdhsa_group_segment_fixed_size 0
  .amdhsa_kernarg_size 96
  .amdhsa_user_sgpr_count 2
  .amdhsa_user_sgpr_kernarg_segment_ptr 1
  .amdhsa_system_sgpr_workgroup_id_x 1
.end_amdhsa_kernel
"""
    return head + A.text() + foot

def stamp_out(A, helper):
    A("s_memrealtime s[84:85]")
    A("s_waitcnt lgkmcnt(0)")
    A("s_mul_i32 s29, s2, 5")
    A("s_add_u32 s29, s29, s20")
    A("s_lshl_b32 s29, s29, 5")
    A(f"s_add_u32 s29, s29, {WS_DBG}")
    for i in range(8):
        A(f"v_mov_b32 v{8+i}, s{70+2*i}")
    A("v_mov_b32 v16, s29")
    A("s_mov_b64 exec, 1")
    A("global_store_dwordx4 v16, v[8:11], s[24:25]")
    A("global_store_dwordx4 v16, v[12:15], s[24:25] offset:16")
    A("s_waitcnt vmcnt(0)")

if __name__ == "__main__":
    kw = eval("dict(" + (sys.argv[2] if len(sys.argv) > 2 else "") + ")")
    open(sys.argv[1], "w").write(gen(**kw))
```

```python
import sys, math, struct

NAME = "recurrent_scan__mha_block_cached__swiglu_ffn__decode"

HDR = """; Kernarg layout for this problem (96 bytes, ptrs only, base s[0:1]):
"""

def f2u(x):
    return struct.unpack("<I", struct.pack("<f", x))[0]

WS_EPOCH = 0x0
WS_TICK  = 0x1000
WS_QP    = 0x10000
WS_P1    = 0x80000
WS_P2    = 0x100000
WS_FP    = 0x140000
WS_DBG   = 0x180000
WS_S1    = 0x1A0000
WS_SIZE  = 0x200000

L_XN = 0
L_Q  = 2048
L_PART = 2304
L_ML = 4352
L_H  = 4480
L_O  = 4608
L_TK = 5120
L_PROG = 5888
L_FT = 6144
L_W = 8192
W_RS = 144
LDS_BYTES = 8192 + 128 * 144

DEAD = 0x10000000
OOBV = 0x7FFFFFF0

SCALE = 128 ** -0.5
LOG2E = 1.4426950408889634
CSC = SCALE * LOG2E

class Em:
    def __init__(self):
        self.L = []
        self.vm = []
    def __call__(self, s):
        self.L.append(s)
    def lab(self, s):
        self.L.append(s + ":")
    def c(self, s):
        self.L.append("; " + s)
    def vmem(self, s, tag):
        self.L.append(s); self.vm.append(tag)
    def wait_tag(self, tag):
        idx = max(i for i, t in enumerate(self.vm) if t == tag)
        n = len(self.vm) - 1 - idx
        assert n <= 63, n
        self.L.append(f"s_waitcnt vmcnt({n})")
        return n
    def text(self):
        out = []
        for x in self.L:
            if x.endswith(":") or x.startswith(";"):
                out.append(x)
            else:
                out.append("    " + x)
        return "\n".join(out) + "\n"

def allreduce(A, op, v, t, rors=(8, 4, 2, 1), x16=True, x32=True):
    for r in rors:
        A("s_nop 1")
        A(f"{op}_dpp v{v}, v{v}, v{v} row_ror:{r} row_mask:0xf bank_mask:0xf")
    if x16:
        A(f"v_mov_b32 v{t}, v{v}")
        A("s_nop 1")
        A(f"v_permlane16_swap_b32 v{v}, v{t}")
        A(f"{op} v{v}, v{v}, v{t}")
    if x32:
        A(f"v_mov_b32 v{t}, v{v}")
        A("s_nop 1")
        A(f"v_permlane32_swap_b32 v{v}, v{t}")
        A(f"{op} v{v}, v{v}, v{t}")

def rne_hi(A, dst, src):
    A(f"v_cvt_pk_bf16_f32 v{dst}, v{src}, v{src}")
    A(f"v_and_b32 v{dst}, 0xffff0000, v{dst}")

def silu(A, dst, src, t):
    A(f"v_mul_f32 v{t}, {hex(f2u(-LOG2E))}, v{src}")
    A(f"v_exp_f32 v{t}, v{t}")
    A("s_nop 0")
    A(f"v_add_f32 v{t}, 1.0, v{t}")
    A(f"v_rcp_f32 v{t}, v{t}")
    A("s_nop 0")
    A(f"v_mul_f32 v{dst}, v{src}, v{t}")

def gen(R=6, F=2, NS=58, HELPER=0, POLL_LIMIT=400000, dbg=False, nt_w="nt", stamp=False, prio=True,
        ffn=1, ffn_nt="nt", ffn_comp=True, ffn_s1=True, ffn_s2=True, gsleep=8, gexp=False,
        LEAD=2, wq_on=True, wo_on=True, psleep=2, cheapq=False, E1=4, E2=4, kpol="nt", vpol="nt", s1sleep=8, early_fp=False, s1pub=True, s1poll=True, fppub=True, s1comp=True, s2on=True, s2lvl=0, qsleep0=0, qsleep=0, lay='head', rot=0, tlbpf=0, tlbpos=1, S=1024, wperm=0, bits=None):
    A = Em()
    NW = 5
    WSTREAM = 32
    NI = 2048
    assert F == 2
    A("s_cmp_ge_u32 s2, 256")
    A("s_cbranch_scc1 L_end")
    A("v_lshrrev_b32 v1, 6, v0")
    A("v_and_b32 v0, 63, v0")
    A("s_load_dwordx2 s[24:25], s[0:1], 88")
    A("v_readfirstlane_b32 s20, v1")
    A("s_lshr_b32 s21, s2, 3")
    A("s_and_b32 s22, s2, 7")
    def ST(i):
        if stamp: A(f"s_memrealtime s[{70+2*i}:{71+2*i}]")
    if stamp:
        for i in range(8): A(f"s_mov_b32 s{70+2*i}, 0")
    ST(0)
    A(f"s_cmp_eq_u32 s20, {HELPER}")
    A("s_cbranch_scc1 L_helper")

    A("s_load_dwordx4 s[4:7], s[0:1], 8")
    if prio: A("s_setprio 1")
    if HELPER == 0:
        A("s_sub_u32 s23, s20, 1")
    else:
        A("s_mov_b32 s23, s20")
    vL = 0
    vKA, vVA, vCTR, vTICK = 2, 3, 4, 5
    vM = 6
    vO = 12
    vS = 16
    vm, vl = 10, 11
    vT, vU, vNM, vAL = 20, 21, 22, 23
    vP = 24
    vA = 28
    vQ = 44
    vRING = 64
    def kreg(k, u): return vRING + k * 32 + u * 4
    def vreg(k, u): return vRING + k * 32 + 16 + u * 4
    assert vRING + R * 32 <= 256
    sOFF = 40
    A("v_and_b32 v20, 15, v0")
    A("v_lshrrev_b32 v21, 4, v0")
    if bits is None:
        lgS = S.bit_length() - 1
        assert S == 1 << lgS and lgS >= 10
        rest = [b for b in range(10, 23) if b not in (lgS, lgS + 1)]
        bits_ = [8, 9, lgS, lgS + 1] + rest
        if wperm == 1:
            r = rest
            bits_ = [8, 9, lgS, lgS + 1] + [r[3], r[4]] + r[0:3] + r[5:]
    else:
        bits_ = list(bits)
    assert sorted(bits_) == list(range(8, 23)), bits_
    bg, bu, bw, bt = bits_[0:2], bits_[2:4], bits_[4:6], bits_[6:]
    def dep2(val, pos): return ((val & 1) << pos[0]) | ((val >> 1) << pos[1])
    def vdep2(dst, src, pos, tmp):
        A(f"v_and_b32 v{dst}, 1, v{src}")
        A(f"v_lshlrev_b32 v{dst}, {pos[0]}, v{dst}")
        A(f"v_lshrrev_b32 v{tmp}, 1, v{src}")
        A(f"v_lshl_add_u32 v{dst}, v{tmp}, {pos[1]}, v{dst}")
    A("v_and_b32 v22, 3, v20")
    vdep2(23, 22, bu, 24)
    A("v_lshrrev_b32 v22, 2, v20")
    vdep2(25, 22, bg, 24)
    A("v_add_u32 v23, v23, v25")
    A(f"v_lshl_add_u32 v{vKA}, v21, 4, v23")
    vdep2(23, 21, bg, 24)
    A(f"v_lshl_add_u32 v{vVA}, v20, 4, v23")
    vVAu = [vVA, 61, 62, 63]
    bigS = dep2(3, bu) >= 4096
    if bigS:
        for u in range(1, 4):
            A(f"v_add_u32 v{vVAu[u]}, {dep2(u, bu)}, v{vVA}")
    def vaddr(u):
        return (f"v{vVAu[u]}", 0) if bigS else (f"v{vVA}", dep2(u, bu))
    runs = []
    i = 0
    while i < 9:
        k = i
        while k + 1 < 9 and bt[k + 1] == bt[k] + 1: k += 1
        runs.append((i + 2, k - i + 1, bt[i])); i = k + 1
    def item_addr(dst, src, tmp):
        d = dst if (len(runs) == 1 or dst != src) else "s38"
        for ri, (lo, ln, pos) in enumerate(runs):
            t = d if ri == 0 else tmp
            A(f"s_bfe_u32 {t}, {src}, {hex((ln << 16) | lo)}")
            A(f"s_lshl_b32 {t}, {t}, {pos}")
            if ri: A(f"s_add_u32 {d}, {d}, {tmp}")
        if d != dst: A(f"s_mov_b32 {dst}, {d}")
    A("v_and_b32 v22, 1, v20")
    A("v_mov_b32 v23, 0xffff")
    A("v_mov_b32 v24, 0xffff0000")
    A("v_cmp_eq_u32 vcc, 1, v22")
    A("v_lshrrev_b32 v25, 1, v20")
    A("s_nop 0")
    A("v_cndmask_b32 v23, v23, v24, vcc")
    for d in range(4):
        A(f"v_cmp_eq_u32 vcc, {d}, v25")
        A("s_nop 1")
        A(f"v_cndmask_b32 v{vM+d}, 0, v23, vcc")
    A(f"v_mov_b32 v{vm}, 0xff800000")
    A(f"v_mov_b32 v{vl}, 0")
    for i in range(4): A(f"v_mov_b32 v{vO+i}, 0")
    A(f"s_mov_b32 s30, {hex(f2u(CSC))}")
    A(f"s_mov_b32 s31, {hex(f2u(-CSC))}")
    A("s_lshl_b32 s26, s21, 23")
    A("s_and_b32 s29, s23, 1"); A(f"s_lshl_b32 s29, s29, {bw[0]}"); A("s_add_u32 s26, s26, s29")
    A("s_lshr_b32 s29, s23, 1"); A(f"s_lshl_b32 s29, s29, {bw[1]}"); A("s_add_u32 s26, s26, s29")
    RS = 32 if lay == "head" else 4
    if lay == "head":
        A("s_lshl_b32 s27, s22, 2")
    else:
        A(f"s_mul_i32 s27, s22, {4*NS}")
    A("s_add_u32 s27, s27, s23")
    if rot:
        A(f"s_mul_i32 s36, s21, {rot}")
    A("s_waitcnt lgkmcnt(0)")
    A("s_mov_b32 s8, s4"); A("s_mov_b32 s9, s5"); A(f"s_mov_b32 s10, {hex(DEAD)}"); A("s_mov_b32 s11, 0x20000")
    A("s_mov_b32 s12, s6"); A("s_mov_b32 s13, s7"); A(f"s_mov_b32 s14, {hex(DEAD)}"); A("s_mov_b32 s15, 0x20000")
    if dbg:
        A("s_mov_b32 s16, s24"); A("s_mov_b32 s17, s25"); A("s_mov_b32 s18, 0"); A("s_mov_b32 s19, 0x20000")
    A("s_barrier")

    def static_off(n):
        k = n % R
        A(f"s_add_u32 s29, s27, {RS*n}")
        if rot:
            A("s_add_u32 s29, s29, s36")
            A("s_and_b32 s29, s29, 2047")
        item_addr("s29", "s29", "s33")
        A(f"s_add_u32 s{sOFF+k}, s29, s26")
    def issueK(n):
        k = n % R
        for u in range(4):
            r = kreg(k, u)
            A.vmem(f"buffer_load_dwordx4 v[{r}:{r+3}], v{vKA}, s[8:11], s{sOFF+k} offen offset:{u*64} {kpol}", ("K", n))
    def issueV(n):
        k = n % R
        for u in range(4):
            r = vreg(k, u)
            va, of = vaddr(u)
            A.vmem(f"buffer_load_dwordx4 v[{r}:{r+3}], {va}, s[12:15], s{sOFF+k} offen offset:{of} {vpol}", ("V", n))
    def qk_mfma(n):
        k = n % R
        for u in range(4):
            r = kreg(k, u)
            c = "0" if u == 0 else f"v[{vS}:{vS+3}]"
            A(f"v_mfma_f32_16x16x32_bf16 v[{vS}:{vS+3}], v[{r}:{r+3}], v[{vQ+4*u}:{vQ+4*u+3}], {c}")
    def softmax(n, pad):
        if pad > 0: A(f"s_nop {pad-1}")
        A(f"v_max3_f32 v{vT}, v{vS}, v{vS+1}, v{vS+2}")
        A(f"v_max_f32 v{vT}, v{vT}, v{vS+3}")
        A(f"v_mov_b32 v{vU}, v{vT}")
        A("s_nop 1")
        A(f"v_permlane16_swap_b32 v{vT}, v{vU}")
        A(f"v_max_f32 v{vT}, v{vT}, v{vU}")
        A(f"v_mov_b32 v{vU}, v{vT}")
        A("s_nop 1")
        A(f"v_permlane32_swap_b32 v{vT}, v{vU}")
        A(f"v_max3_f32 v{vT}, v{vT}, v{vU}, v{vm}")
        A(f"v_mul_f32 v{vNM}, s31, v{vT}")
        A(f"v_fma_f32 v{vAL}, v{vm}, s30, v{vNM}")
        for i in range(4):
            A(f"v_fma_f32 v{vP+i}, v{vS+i}, s30, v{vNM}")
        A(f"v_exp_f32 v{vAL}, v{vAL}")
        for i in range(4):
            A(f"v_exp_f32 v{vP+i}, v{vP+i}")
        A(f"v_mov_b32 v{vm}, v{vT}")
        for i in range(4):
            A(f"v_mul_f32 v{vO+i}, v{vO+i}, v{vAL}")
        A(f"v_add_f32 v{vT}, v{vP}, v{vP+1}")
        A(f"v_add_f32 v{vU}, v{vP+2}, v{vP+3}")
        for i in range(4):
            A(f"v_cvt_pk_bf16_f32 v{vP+i}, v{vP+i}, v{vP+i}")
        A(f"v_add_f32 v{vT}, v{vT}, v{vU}")
        A(f"v_fma_f32 v{vl}, v{vl}, v{vAL}, v{vT}")
        for i in range(4):
            for d in range(4):
                A(f"v_and_b32 v{vA+4*i+d}, v{vP+i}, v{vM+d}")
    def pv_mfma(n):
        k = n % R
        for u in range(4):
            r = vreg(k, u)
            A(f"v_mfma_f32_16x16x32_bf16 v[{vO}:{vO+3}], v[{vA+4*u}:{vA+4*u+3}], v[{r}:{r+3}], v[{vO}:{vO+3}]")

    units = []
    def issue_unit(u):
        n = u // 2
        if u % 2 == 0:
            static_off(n); issueK(n)
        else:
            issueV(n)
    def land_unit(u):
        A.wait_tag(("K" if u % 2 == 0 else "V", u // 2))
    for u in range(F): issue_unit(u)
    for u in range(2 * R - F):
        land_unit(u); issue_unit(u + F)
    ST(1)
    A("s_barrier")
    ST(2)
    A("v_lshrrev_b32 v20, 4, v0")
    A("v_lshlrev_b32 v20, 4, v20")
    for s in range(4):
        A(f"ds_read_b128 v[{vQ+4*s}:{vQ+4*s+3}], v20 offset:{L_Q + s*64}")
    A("s_waitcnt lgkmcnt(0)")
    P = 0; I = 2 * R; Ld = 2 * R - F
    def proc_unit(u):
        n = u // 2
        if u % 2 == 0:
            qk_mfma(n); softmax(n, 8)
        else:
            A("s_nop 1")
            pv_mfma(n)
    state_ok = lambda: (P == Ld and P % 2 == 0 and I == P + F)
    steps = 0
    while not state_ok():
        steps += 1
        assert steps < 100
        while P <= I - 2 * R:
            proc_unit(P); P += 1
        if I - Ld < F or True:
            land_unit(Ld); Ld += 1
            issue_unit(I); I += 1
        k = 0
        while P < Ld and k < 2:
            proc_unit(P); P += 1; k += 1
        if P == Ld and P % 2 == 1:
            land_unit(Ld); Ld += 1
            issue_unit(I); I += 1
            proc_unit(P); P += 1
    n0 = P // 2
    assert I == 2 * n0 + 2
    A.c(f"catch-up done: loop starts at item {n0}, slot {n0 % R}")
    ST(3)
    assert n0 + 2 <= NS
    POOL = NI - 32 * NS
    vTKD = 60
    A(f"s_add_u32 s27, s27, {RS*(n0+1)}")
    A(f"s_mov_b32 s28, {n0+1}")
    A(f"v_mov_b32 v{vCTR}, {L_TK - 4*(NS - (n0+2))}")
    A(f"v_mov_b32 v{vTICK}, {n0+1}")
    A("s_lshl_b32 s29, s23, 2")
    A(f"s_add_u32 s29, s29, {L_PROG}")
    A("v_mov_b32 v1, s29")
    A(f"s_add_u32 s35, s23, {32*NS}")
    if dbg:
        A("s_mov_b32 s60, 0"); A("s_mov_b32 s61, 0")
    A.lab("L_loop")
    spins = []
    for kk in range(R):
        n = n0 + kk
        k = n % R; k2 = (n + 1) % R
        A.c(f"--- item slot {k}")
        A(f"s_cmp_ge_u32 s{sOFF+k}, {hex(DEAD)}")
        A("s_cbranch_scc1 L_fin")
        A(f"s_cmp_lt_u32 s28, {NS}")
        A(f"s_cbranch_scc1 L_stat{kk}")
        A("s_waitcnt lgkmcnt(0)")
        A(f"v_readfirstlane_b32 s29, v{vTKD}")
        A("s_cmp_eq_u32 s29, -1")
        A(f"s_cbranch_scc1 L_spin{kk}")
        A.lab(f"L_back{kk}")
        A("s_add_u32 s27, s29, s35")
        A.lab(f"L_stat{kk}")
        if rot:
            A("s_add_u32 s33, s27, s36")
            A("s_and_b32 s33, s33, 2047")
            item_addr("s33", "s33", "s37")
        else:
            item_addr("s33", "s27", "s37")
        A("s_add_u32 s33, s33, s26")
        A(f"s_cmp_lt_u32 s27, {NI}")
        A(f"s_cselect_b32 s{sOFF+k2}, s33, {hex(DEAD)}")
        if dbg:
            A("s_cselect_b32 s62, s27, 0")
            A("s_cselect_b32 s63, 1, 0")
            A("s_add_u32 s60, s60, s62")
            A("s_add_u32 s61, s61, s63")
        A(f"s_add_u32 s27, s27, {RS}")
        A("s_add_u32 s28, s28, 1")
        A("s_waitcnt vmcnt(4)")
        for u in range(4):
            r = kreg(k2, u)
            A(f"buffer_load_dwordx4 v[{r}:{r+3}], v{vKA}, s[8:11], s{sOFF+k2} offen offset:{u*64} {kpol}")
        A(f"ds_write_b32 v1, v{vTICK}")
        A(f"ds_read_b32 v{vTKD}, v{vCTR}")
        qk_mfma(n)
        A(f"v_add_u32 v{vTICK}, 1, v{vTICK}")
        A(f"v_add_u32 v{vCTR}, 4, v{vCTR}")
        softmax(n, 6)
        A("s_waitcnt vmcnt(4)")
        for u in range(4):
            r = vreg(k2, u)
            va, of = vaddr(u)
            A(f"buffer_load_dwordx4 v[{r}:{r+3}], {va}, s[12:15], s{sOFF+k2} offen offset:{of} {vpol}")
        pv_mfma(n)
        spins.append(kk)
    A("s_branch L_loop")
    for kk in spins:
        A.lab(f"L_spin{kk}")
        A(f"s_mov_b32 s34, {POLL_LIMIT}")
        A(f"v_add_u32 v{vT}, -4, v{vCTR}")
        A.lab(f"L_spin{kk}_l")
        A(f"ds_read_b32 v{vTKD}, v{vT}")
        A("s_waitcnt lgkmcnt(0)")
        A(f"v_readfirstlane_b32 s29, v{vTKD}")
        A("s_cmp_lg_u32 s29, -1")
        A(f"s_cbranch_scc1 L_back{kk}")
        A("s_sleep 1")
        A("s_sub_u32 s34, s34, 1")
        A("s_cmp_lg_u32 s34, 0")
        A(f"s_cbranch_scc1 L_spin{kk}_l")
        A(f"s_mov_b32 s29, {POOL}")
        A(f"s_branch L_back{kk}")
    A.lab("L_fin")
    A("s_nop 7")
    A("v_lshrrev_b32 v20, 4, v0")
    A("v_and_b32 v21, 15, v0")
    A("s_lshl_b32 s29, s23, 5")
    A(f"s_add_u32 s29, s29, {L_ML}")
    A("v_lshlrev_b32 v22, 2, v20")
    A("v_add_u32 v22, s29, v22")
    A(f"ds_write_b32 v22, v{vl}")
    A("v_mov_b32 v22, s29")
    A(f"ds_write_b32 v22, v{vm} offset:16")
    A("s_lshl_b32 s29, s23, 9")
    A(f"s_add_u32 s29, s29, {L_PART}")
    A("v_lshlrev_b32 v22, 5, v21")
    A("v_lshl_add_u32 v22, v20, 4, v22")
    A("v_add_u32 v22, s29, v22")
    A("s_mov_b32 exec_hi, 0")
    A(f"ds_write_b128 v22, v[{vO}:{vO+3}]")
    A("s_mov_b32 exec_hi, -1")
    ST(4)
    A("s_waitcnt lgkmcnt(0)")
    A("s_barrier")
    ST(5)
    A("s_waitcnt vmcnt(0)")
    if dbg:
        A("s_lshl_b32 s29, s2, 2")
        A("s_add_u32 s29, s29, s23")
        A("s_lshl_b32 s29, s29, 3")
        A(f"s_add_u32 s29, s29, {WS_DBG + 0x10000}")
        A("v_mov_b32 v8, s60"); A("v_mov_b32 v9, s61"); A("v_mov_b32 v12, 0")
        A(f"s_mov_b32 s18, {hex(WS_SIZE)}")
        A("s_mov_b64 exec, 1")
        A("buffer_store_dwordx2 v[8:9], v12, s[16:19], s29 offen")
        A("s_waitcnt vmcnt(0)")
    if stamp:
        stamp_out(A, 0)
    A("s_endpgm")

    A.lab("L_helper")
    A.vm = []
    A("s_load_dwordx2 s[4:5], s[0:1], 0")
    A("s_load_dwordx4 s[36:39], s[0:1], 24")
    A("s_load_dwordx4 s[44:47], s[0:1], 48")
    A("s_load_dwordx4 s[48:51], s[0:1], 64")
    if tlbpf: A("s_load_dwordx4 s[40:43], s[0:1], 8")
    if prio: A("s_setprio 3")
    hE = 2
    hT = 4
    hX = 8
    hF = 12
    hW = 64
    hM = 20
    hD = 28
    A("v_and_b32 v32, 15, v0")
    A("v_lshrrev_b32 v33, 4, v0")
    A("s_lshl_b32 s29, s22, 19")
    A("s_lshl_b32 s30, s21, 8")
    A("s_add_u32 s29, s29, s30")
    A("v_lshlrev_b32 v34, 17, v33")
    A("v_lshl_add_u32 v34, v32, 4, v34")
    A("v_add_u32 v34, s29, v34")
    A("v_lshlrev_b32 v35, 4, v0")
    A("v_mov_b32 v36, 0")
    A("s_waitcnt lgkmcnt(0)")
    A("s_mov_b32 s12, s24"); A("s_mov_b32 s13, s25"); A(f"s_mov_b32 s14, {hex(WS_SIZE)}"); A("s_mov_b32 s15, 0x20000")
    A("s_mov_b32 s8, s4"); A("s_mov_b32 s9, s5"); A("s_mov_b32 s10, 1024"); A("s_mov_b32 s11, 0x20000")
    A("s_mov_b32 s16, s36"); A("s_mov_b32 s17, s37"); A(f"s_mov_b32 s18, {512*8192}"); A("s_mov_b32 s19, 0x20000")
    A.vmem(f"buffer_load_dwordx4 v[{hX}:{hX+3}], v35, s[8:11], 0 offen", "x")
    A.vmem(f"buffer_load_dwordx2 v[{hE}:{hE+1}], v36, s[12:15], 0 offen sc1", "E")
    for i in range(16):
        A(f"s_mov_b32 s29, {i*8192}")
        if wq_on or i == 0: A.vmem(f"buffer_load_dwordx4 v[{hW+4*i}:{hW+4*i+3}], v34, s[16:19], s29 offen {nt_w}", "wq")
    A("s_barrier")
    A("s_cmp_lg_u32 s22, 0")
    A("s_cbranch_scc1 L_nozero")
    A("s_lshl_b32 s29, s21, 7")
    A(f"s_add_u32 s29, s29, {WS_TICK}")
    A("s_mov_b64 exec, 1")
    A("buffer_store_dword v36, v36, s[12:15], s29 offen sc1")
    A("s_mov_b64 exec, -1")
    A.lab("L_nozero")
    A("v_lshlrev_b32 v37, 2, v0")
    A("v_mov_b32 v38, -1")
    for q in range(3):
        A(f"ds_write_b32 v37, v38 offset:{L_TK + 256*q}")
    A(f"ds_write_b32 v37, v36 offset:{L_PROG}")
    A("v_and_b32 v37, 1, v32")
    A("v_mov_b32 v38, 0xffff")
    A("v_mov_b32 v39, 0xffff0000")
    A("v_cmp_eq_u32 vcc, 1, v37")
    A("v_lshrrev_b32 v40, 1, v32")
    A("v_and_b32 v41, 3, v40")
    A("v_cndmask_b32 v38, v38, v39, vcc")
    for d in range(4):
        A(f"v_cmp_eq_u32 vcc, {d}, v40")
        A("s_nop 1")
        A(f"v_cndmask_b32 v{hM+d}, 0, v38, vcc")
        A(f"v_cmp_eq_u32 vcc, {d}, v41")
        A("s_nop 1")
        A(f"v_cndmask_b32 v{hM+4+d}, 0, v38, vcc")
    ST(1)
    A(f"s_waitcnt vmcnt({16 if wq_on else 1})")
    for q in range(4):
        A(f"v_lshlrev_b32 v{hF+2*q}, 16, v{hX+q}")
        A(f"v_and_b32 v{hF+2*q+1}, 0xffff0000, v{hX+q}")
    A(f"v_add_co_u32 v{hT}, vcc, 1, v{hE}")
    A("s_nop 1")
    A(f"v_addc_co_u32 v{hT+1}, vcc, 0, v{hE+1}, vcc")
    A(f"v_add_f32 v42, v{hF}, v{hF+1}")
    for q in range(2, 8):
        A(f"v_add_f32 v42, v42, v{hF+q}")
    allreduce(A, "v_add_f32", 42, 43)
    A(f"v_mul_f32 v42, {hex(f2u(1/512))}, v42")
    A(f"v_sub_f32 v44, v{hF}, v42")
    A("v_mul_f32 v45, v44, v44")
    for q in range(1, 8):
        A(f"v_sub_f32 v44, v{hF+q}, v42")
        A("v_fmac_f32 v45, v44, v44")
    allreduce(A, "v_add_f32", 45, 43)
    A(f"v_mul_f32 v45, {hex(f2u(1/512))}, v45")
    rne_hi(A, 42, 42)
    rne_hi(A, 45, 45)
    A(f"v_add_f32 v45, {hex(f2u(1e-5))}, v45")
    rne_hi(A, 45, 45)
    A("v_sqrt_f32 v45, v45")
    A("s_nop 0")
    rne_hi(A, 45, 45)
    A("v_rcp_f32 v46, v45")
    for q in range(8):
        A(f"v_sub_f32 v{hF+q}, v{hF+q}, v42")
        rne_hi(A, hF + q, hF + q)
        A(f"v_mul_f32 v44, v{hF+q}, v46")
        A(f"v_fma_f32 v47, -v44, v45, v{hF+q}")
        A(f"v_fma_f32 v44, v47, v46, v44")
        rne_hi(A, hF + q, 44)
    A("v_lshlrev_b32 v44, 5, v0")
    A(f"ds_write_b128 v44, v[{hF}:{hF+3}] offset:{L_XN}")
    A(f"ds_write_b128 v44, v[{hF+4}:{hF+7}] offset:{L_XN+16}")
    A("s_lshl_b32 s29, s22, 8")
    A("v_lshlrev_b32 v44, 6, v33")
    A("v_add_u32 v44, s29, v44")
    A("s_waitcnt lgkmcnt(0)")
    hXA = 128
    for q in range(4):
        A(f"ds_read_b128 v[{hXA+4*q}:{hXA+4*q+3}], v44 offset:{L_XN+16*q}")
    A("s_waitcnt lgkmcnt(0)")
    for i in range(16):
        A(f"v_cvt_pk_bf16_f32 v{hXA+i}, v{hXA+i}, v{hXA+i}")
    A("s_waitcnt vmcnt(0)")
    ST(2)
    hA = 144
    for i in range(16):
        a = hA + 4 * (i & 1)
        for d in range(4):
            A(f"v_and_b32 v{a+d}, v{hXA+i}, v{hM+d}")
        A("s_nop 1")
        c = "0" if i == 0 else f"v[{hD}:{hD+3}]"
        A(f"v_mfma_f32_16x16x32_bf16 v[{hD}:{hD+3}], v[{a}:{a+3}], v[{hW+4*i}:{hW+4*i+3}], {c}")
    A("s_lshl_b32 s29, s2, 10")
    A(f"s_add_u32 s29, s29, {WS_QP}")
    A("v_and_b32 v44, 1, v33")
    A("v_lshlrev_b32 v44, 5, v44")
    A("v_lshrrev_b32 v45, 1, v33")
    A("v_lshl_add_u32 v44, v45, 4, v44")
    A("v_lshl_add_u32 v6, v32, 6, v44")
    A("s_nop 3")
    def publish1(dreg, vaddr, soff):
        A(f"v_permlane32_swap_b32 v{dreg}, v{dreg+2}")
        A(f"v_permlane32_swap_b32 v{dreg+1}, v{dreg+3}")
        A(f"v_mov_b32 v50, v{hT}"); A(f"v_mov_b32 v51, v{hT+1}")
        A(f"v_mov_b32 v48, v{dreg}"); A(f"v_mov_b32 v49, v{dreg+1}")
        A(f"buffer_store_dwordx4 v[48:51], v{vaddr}, s[12:15], {soff} offen sc1")
    publish1(hD, 6, "s29")
    def poll(label, loads, nregs_tagpairs, extra_ok=None, sleep=0):
        A(f"s_mov_b32 s34, {POLL_LIMIT}")
        A.lab(label)
        loads()
        A("s_waitcnt vmcnt(0)")
        A("s_mov_b64 s[30:31], -1")
        for idx, tp in enumerate(nregs_tagpairs):
            A(f"v_cmp_eq_u64 vcc, v[{tp}:{tp+1}], v[{hT}:{hT+1}]")
            if extra_ok and idx in extra_ok:
                A(f"s_or_b64 vcc, vcc, {extra_ok[idx]}")
            A("s_and_b64 s[30:31], s[30:31], vcc")
        A("s_cmp_eq_u64 s[30:31], -1")
        A(f"s_cbranch_scc1 {label}_ok")
        if sleep: A(f"s_sleep {sleep}")
        A("s_sub_u32 s34, s34, 1")
        A("s_cmp_lg_u32 s34, 0")
        A(f"s_cbranch_scc1 {label}")
        A.lab(label + "_ok")
    hG = 64
    A("s_lshl_b32 s29, s21, 13")
    A(f"s_add_u32 s29, s29, {WS_QP}")
    def qloads():
        for jj in range(8):
            A(f"s_add_u32 s33, s29, {jj*1024}")
            A(f"buffer_load_dwordx4 v[{hG+4*jj}:{hG+4*jj+3}], v35, s[12:15], s33 offen sc1")
    if cheapq:
        A("v_lshlrev_b32 v45, 10, v0")
        A("v_add_u32 v45, 1008, v45")
        A(f"v_mov_b32 v46, {hex(OOBV)}")
        A("v_cmp_gt_u32 vcc, 8, v0")
        A("s_nop 1")
        A("v_cndmask_b32 v45, v46, v45, vcc")
        A("s_mov_b32 s52, 0xffffff00"); A("s_mov_b32 s53, -1")
        def qpre():
            A(f"buffer_load_dwordx4 v[{hG}:{hG+3}], v45, s[12:15], s29 offen sc1")
        poll("L_pq0", qpre, [hG + 2], extra_ok={0: "s[52:53]"}, sleep=psleep)
    if qsleep0: A(f"s_sleep {qsleep0}")
    poll("L_pq", qloads, [hG + 4 * jj + 2 for jj in range(8)], sleep=qsleep)
    A(f"v_add_f32 v44, v{hG}, v{hG+4}")
    A(f"v_add_f32 v45, v{hG+1}, v{hG+5}")
    for jj in range(2, 8):
        A(f"v_add_f32 v44, v44, v{hG+4*jj}")
        A(f"v_add_f32 v45, v45, v{hG+4*jj+1}")
    A("v_cvt_pk_bf16_f32 v44, v44, v45")
    A("v_lshlrev_b32 v45, 2, v0")
    A(f"ds_write_b32 v45, v44 offset:{L_Q}")
    A("s_waitcnt lgkmcnt(0)")
    ST(3)
    A("s_barrier")
    if prio: A("s_setprio 0")
    def tlb_touch():
        npg = 8192 // tlbpf
        assert npg <= 64
        A(f"v_mul_u32_u24 v44, {tlbpf*1024}, v0")
        A(f"v_mov_b32 v45, {hex(OOBV)}")
        A(f"v_cmp_gt_u32 vcc, {npg}, v0")
        A("s_lshl_b32 s29, s21, 23")
        A("v_cndmask_b32 v44, v45, v44, vcc")
        A("s_mov_b32 s8, s40"); A("s_mov_b32 s9, s41"); A(f"s_mov_b32 s10, {hex(DEAD)}"); A("s_mov_b32 s11, 0x20000")
        A("buffer_load_dword v60, v44, s[8:11], s29 offen nt")
        A("s_mov_b32 s8, s42"); A("s_mov_b32 s9, s43")
        A("buffer_load_dword v61, v44, s[8:11], s29 offen nt")
    if tlbpf and tlbpos == 1: tlb_touch()

    A("s_and_b32 s29, s2, 7")
    A("s_lshl_b32 s29, s29, 1")
    A("s_bfe_u32 s30, s2, 0x10003")
    A("s_or_b32 s58, s29, s30")
    A("s_lshr_b32 s59, s2, 4")
    A("s_cmp_ge_u32 s58, 11")
    A("s_cbranch_scc1 L_nos1")
    if not ffn: A("s_branch L_nos1")
    A("s_mov_b32 s8, s44"); A("s_mov_b32 s9, s45"); A(f"s_mov_b32 s10, {512*2752}"); A("s_mov_b32 s11, 0x20000")
    A("s_mov_b32 s16, s46"); A("s_mov_b32 s17, s47"); A(f"s_mov_b32 s18, {512*2752}"); A("s_mov_b32 s19, 0x20000")
    A("s_and_b32 s31, s59, 1")
    A("s_lshr_b32 s30, s59, 1")
    A("s_lshl_b32 s30, s30, 6")
    A("s_add_u32 s30, s30, s31")
    A("v_lshlrev_b32 v44, 4, v33")
    A("v_add_u32 v44, s30, v44")
    A("v_lshlrev_b32 v47, 2, v44")
    A("v_mul_u32_u24 v44, 2752, v44")
    A("v_lshl_add_u32 v44, v32, 4, v44")
    A("s_lshl_b32 s33, s58, 7")
    A("s_lshl_b32 s34, s31, 5")
    A("s_sub_u32 s33, s33, s34")
    A("v_lshlrev_b32 v45, 3, v32")
    A("v_add_u32 v45, s33, v45")
    A("s_lshl_b32 s33, s33, 1")
    A("v_add_u32 v44, s33, v44")
    A(f"v_mov_b32 v46, {hex(OOBV)}")
    A("v_cmp_gt_u32 vcc, 1376, v45")
    A("s_nop 1")
    A("v_cndmask_b32 v44, v46, v44, vcc")
    for i in range(8):
        A(f"s_mov_b32 s33, {2*i*2752}")
        if ffn_s1:
            A(f"buffer_load_dwordx4 v[{64+4*i}:{64+4*i+3}], v44, s[8:11], s33 offen {ffn_nt}")
            A(f"buffer_load_dwordx4 v[{96+4*i}:{96+4*i+3}], v44, s[16:19], s33 offen {ffn_nt}")
    for q in range(4):
        A(f"ds_read2_b32 v[{128+2*q}:{129+2*q}], v47 offset0:{L_XN//4 + 4*q} offset1:{L_XN//4 + 4*q + 2}")
    for d in range(4):
        A(f"v_xor_b32 v{hM+4+d}, v{hM+4+d}, v{hM+d}")
    A("v_and_b32 v45, 1, v33")
    A("v_lshlrev_b32 v45, 5, v45")
    A("v_lshrrev_b32 v46, 1, v33")
    A("v_lshl_add_u32 v45, v46, 4, v45")
    A("v_and_b32 v46, 3, v32")
    A("v_lshl_add_u32 v45, v46, 6, v45")
    A("v_lshrrev_b32 v46, 2, v32")
    A("v_lshl_add_u32 v45, v46, 9, v45")
    A("s_mul_i32 s29, s59, 22528")
    A("s_lshl_b32 s30, s58, 11")
    A("s_add_u32 s29, s29, s30")
    A(f"s_add_u32 s29, s29, {WS_S1}")
    A("s_waitcnt lgkmcnt(0)")
    for i in range(8):
        A(f"v_cvt_pk_bf16_f32 v{128+i}, v{128+i}, v{128+i}")
    A("s_waitcnt vmcnt(0)")
    for i in range(8):
        for mtx in range(2):
            a = hA + 4 * mtx
            for d in range(4):
                A(f"v_and_b32 v{a+d}, v{128+i}, v{hM+4*mtx+d}")
            A("s_nop 1")
            c = "0" if (i == 0 and mtx == 0) else f"v[{hD}:{hD+3}]"
            w = 64 + 32 * mtx + 4 * i
            A(f"v_mfma_f32_16x16x32_bf16 v[{hD}:{hD+3}], v[{a}:{a+3}], v[{w}:{w+3}], {c}")
    A(f"v_mov_b32 v50, v{hT}"); A(f"v_mov_b32 v51, v{hT+1}")
    A(f"v_mov_b32 v54, v{hT}"); A(f"v_mov_b32 v55, v{hT+1}")
    A("s_nop 7")
    A(f"v_permlane32_swap_b32 v{hD}, v{hD+1}")
    A(f"v_permlane32_swap_b32 v{hD+2}, v{hD+3}")
    A("s_nop 1")
    A(f"v_mov_b32 v48, v{hD}"); A(f"v_mov_b32 v49, v{hD+1}")
    A(f"v_mov_b32 v52, v{hD+2}"); A(f"v_mov_b32 v53, v{hD+3}")
    if s1pub:
        A("buffer_store_dwordx4 v[48:51], v45, s[12:15], s29 offen sc1")
        A("buffer_store_dwordx4 v[52:55], v45, s[12:15], s29 offen offset:256 sc1")
    A.lab("L_nos1")

    A("s_mov_b32 s16, s38"); A("s_mov_b32 s17, s39"); A(f"s_mov_b32 s18, {4096*1024}"); A("s_mov_b32 s19, 0x20000")
    hWO = 160
    A("v_lshrrev_b32 v44, 3, v0")
    A("v_lshlrev_b32 v44, 14, v44")
    A("v_and_b32 v45, 7, v0")
    A("v_lshl_add_u32 v44, v45, 4, v44")
    A("s_lshl_b32 s29, s21, 17")
    A("s_lshl_b32 s30, s22, 7")
    A("s_add_u32 s29, s29, s30")
    for i in range(16):
        A(f"s_add_u32 s33, s29, {i*1024}")
        if wo_on: A(f"buffer_load_dwordx4 v[{hWO+4*i}:{hWO+4*i+3}], v44, s[16:19], s33 offen {nt_w}")
    A("v_lshrrev_b32 v44, 3, v0")
    A(f"v_mul_u32_u24 v44, {16*W_RS}, v44")
    A("v_and_b32 v45, 7, v0")
    A("v_lshl_add_u32 v44, v45, 4, v44")
    A("s_waitcnt vmcnt(0)")
    for i in range(16):
        A(f"ds_write_b128 v44, v[{hWO+4*i}:{hWO+4*i+3}] offset:{L_W + i*W_RS}")
        if i % 8 == 7: A("s_waitcnt lgkmcnt(0)")
    A(f"v_mul_u32_u24 v44, {8*W_RS}, v33")
    A("v_lshl_add_u32 v44, v32, 1, v44")
    for cg in range(4):
        for sx in range(4):
            for e in range(8):
                A(f"ds_read_u16 v{64+e}, v44 offset:{L_W + (32*sx + e)*W_RS + 32*cg}")
            A("s_waitcnt lgkmcnt(0)")
            for d in range(4):
                A(f"v_lshl_or_b32 v{hWO + 16*cg + 4*sx + d}, v{64+2*d+1}, 16, v{64+2*d}")

    A("s_cmp_lt_u32 s58, 11")
    A("s_cbranch_scc1 L_noffn")
    A("s_sub_u32 s35, s58, 11")
    A("s_lshl_b32 s35, s35, 4")
    A("s_add_u32 s35, s35, s59")
    A("s_cmp_ge_u32 s35, 43")
    A("s_cbranch_scc1 L_noffn")
    if not ffn or not s2on: A("s_branch L_noffn")
    hAG = 12
    hAU = 56
    def wait_prog(label, level):
        A(f"v_mov_b32 v46, {L_PROG}")
        A(f"s_mov_b32 s34, {POLL_LIMIT}")
        A.lab(label)
        A("ds_read_b128 v[64:67], v46")
        A("s_waitcnt lgkmcnt(0)")
        A("v_max3_u32 v64, v64, v65, v66")
        A("v_max_u32 v64, v64, v67")
        A("s_nop 0")
        A("v_readfirstlane_b32 s29, v64")
        A(f"s_cmp_ge_u32 s29, {level}")
        A(f"s_cbranch_scc1 {label}_ok")
        A("s_sleep 8")
        A("s_sub_u32 s34, s34, 1")
        A("s_cmp_lg_u32 s34, 0")
        A(f"s_cbranch_scc1 {label}")
        A.lab(label + "_ok")
    if s2lvl: wait_prog("L_w2", s2lvl)
    A("v_lshrrev_b32 v44, 5, v0")
    A(f"v_mul_u32_u24 v44, {22528+512}, v44")
    A("v_and_b32 v45, 31, v0")
    A("v_lshl_add_u32 v44, v45, 4, v44")
    A("s_lshl_b32 s29, s35, 9")
    A(f"s_add_u32 s29, s29, {WS_S1}")
    def s1loads():
        for k in range(8):
            A(f"s_add_u32 s33, s29, {2*k*22528}")
            A(f"buffer_load_dwordx4 v[{64+4*k}:{64+4*k+3}], v44, s[12:15], s33 offen sc1")
    if s1poll: poll("L_ps1", s1loads, [64 + 4 * k + 2 for k in range(8)], sleep=s1sleep)
    A("v_add_f32 v12, v64, v68"); A("v_add_f32 v13, v65, v69")
    for k in range(2, 8):
        A(f"v_add_f32 v12, v12, v{64+4*k}"); A(f"v_add_f32 v13, v13, v{64+4*k+1}")
    allreduce(A, "v_add_f32", 12, 46, rors=(), x16=False)
    allreduce(A, "v_add_f32", 13, 46, rors=(), x16=False)
    rne_hi(A, 12, 12)
    silu(A, 12, 12, 46)
    rne_hi(A, 12, 12)
    rne_hi(A, 13, 13)
    A("v_mul_f32 v12, v12, v13")
    rne_hi(A, 12, 12)
    A("v_bfe_u32 v46, v45, 2, 2")
    A("v_lshlrev_b32 v46, 3, v46")
    A("v_bfe_u32 v47, v45, 1, 1")
    A("v_lshl_add_u32 v46, v47, 2, v46")
    A("v_lshrrev_b32 v47, 4, v45")
    A("v_lshl_add_u32 v46, v47, 1, v46")
    A("v_and_b32 v47, 1, v45")
    A("v_add_u32 v46, v46, v47")
    A("v_lshlrev_b32 v45, 2, v46")
    A(f"ds_write_b32 v45, v12 offset:{L_H}")
    A("s_mov_b32 s8, s48"); A("s_mov_b32 s9, s49"); A(f"s_mov_b32 s10, {1376*1024}"); A("s_mov_b32 s11, 0x20000")
    A("s_lshl_b32 s31, s35, 15")
    A(f"v_mov_b32 v47, {L_H}")
    for q in range(8): A(f"v_mov_b32 v{hAU+q}, 0")
    A("s_mov_b32 s32, 4")
    A("s_waitcnt lgkmcnt(0)")
    A.lab("L_f2")
    for i in range(8):
        A(f"s_add_u32 s33, s31, {i*1024}")
        if ffn_s2: A(f"buffer_load_dwordx4 v[{64+4*i}:{64+4*i+3}], v35, s[8:11], s33 offen {ffn_nt}")
    A("ds_read_b128 v[128:131], v47")
    A("ds_read_b128 v[132:135], v47 offset:16")
    A("v_add_u32 v47, 32, v47")
    A(f"s_add_u32 s31, s31, {8*1024}")
    A("s_waitcnt vmcnt(0) lgkmcnt(0)")
    for i in range(8 if ffn_comp else 0):
        for q in range(4):
            r = 64 + 4 * i + q
            A(f"v_lshlrev_b32 v44, 16, v{r}")
            A(f"v_and_b32 v45, 0xffff0000, v{r}")
            A(f"v_fmac_f32 v{hAU+2*q}, v44, v{128+i}")
            A(f"v_fmac_f32 v{hAU+2*q+1}, v45, v{128+i}")
    A("s_sub_u32 s32, s32, 1")
    A("s_cmp_lg_u32 s32, 0")
    A("s_cbranch_scc1 L_f2")
    A("v_lshlrev_b32 v44, 5, v0")
    A(f"ds_write_b128 v44, v[{hAU}:{hAU+3}] offset:{L_FT}")
    A(f"ds_write_b128 v44, v[{hAU+4}:{hAU+7}] offset:{L_FT+16}")
    A("v_lshlrev_b32 v44, 3, v0")
    A("s_waitcnt lgkmcnt(0)")
    for q in range(4):
        A(f"ds_read_b64 v[{64+4*q}:{64+4*q+1}], v44 offset:{L_FT + 512*q}")
        A(f"v_mov_b32 v{64+4*q+2}, v{hT}"); A(f"v_mov_b32 v{64+4*q+3}, v{hT+1}")
    A("s_lshl_b32 s29, s35, 12")
    A(f"s_add_u32 s29, s29, {WS_FP}")
    A("s_waitcnt lgkmcnt(0)")
    for q in range(4 if fppub else 0):
        A(f"buffer_store_dwordx4 v[{64+4*q}:{64+4*q+3}], v35, s[12:15], s29 offen offset:{1024*q} sc1")
    A.lab("L_noffn")

    def emit_fp():
        A("s_and_b32 s29, s21, 7")
        A("s_cmp_lg_u32 s29, s22")
        A("s_cbranch_scc1 L_nocons1")
        hGG = 56
        A("v_lshrrev_b32 v45, 3, v0")
        A("v_lshlrev_b32 v45, 12, v45")
        A("v_and_b32 v46, 7, v0")
        A("v_lshl_add_u32 v45, v46, 4, v45")
        A("s_lshl_b32 s29, s21, 7")
        A(f"s_add_u32 s29, s29, {WS_FP}")
        A(f"v_mov_b32 v47, {hex(OOBV)}")
        A("v_cmp_gt_u32 vcc, 24, v0")
        A("s_nop 1")
        A("v_cndmask_b32 v47, v47, v45, vcc")
        A("s_mov_b32 s52, 0xff000000"); A("s_mov_b32 s53, -1")
        def floads():
            for k in range(6):
                A(f"s_add_u32 s33, s29, {k*8*4096}")
                va = 47 if k == 5 else 45
                A(f"buffer_load_dwordx4 v[{64+4*k}:{64+4*k+3}], v{va}, s[12:15], s33 offen sc1")
        if ffn and not gexp:
            poll("L_pf", floads, [64 + 4 * k + 2 for k in range(6)], extra_ok={5: "s[52:53]"}, sleep=gsleep)
        A("v_add_f32 v56, v64, v68"); A("v_add_f32 v57, v65, v69")
        for k in range(2, 6):
            A(f"v_add_f32 v56, v56, v{64+4*k}"); A(f"v_add_f32 v57, v57, v{64+4*k+1}")
        allreduce(A, "v_add_f32", 56, 44, rors=(8,))
        allreduce(A, "v_add_f32", 57, 44, rors=(8,))
        for r in (56, 57):
            rne_hi(A, r, r)
            silu(A, r, r, 44)
            rne_hi(A, r, r)
        A("s_mov_b32 s8, s4"); A("s_mov_b32 s9, s5"); A("s_mov_b32 s10, 1024"); A("s_mov_b32 s11, 0x20000")
        A("s_lshl_b32 s29, s21, 5")
        A("v_lshlrev_b32 v46, 2, v46")
        A("buffer_load_dword v58, v46, s[8:11], s29 offen")
        A("s_waitcnt vmcnt(0)")
        A("v_and_b32 v59, 0xffff0000, v58")
        A("v_lshlrev_b32 v58, 16, v58")
        A.lab("L_nocons1")
    if early_fp: emit_fp()
    A("s_lshl_b32 s29, s21, 7")
    A(f"s_add_u32 s29, s29, {WS_TICK}")
    A("v_mov_b32 v44, s29")
    A(f"v_mov_b32 v45, {hex(OOBV)}")
    A("v_cmp_eq_u32 vcc, 0, v0")
    A(f"v_mov_b32 v46, {L_PROG}")
    A(f"v_mov_b32 v47, {L_TK}")
    A("v_cndmask_b32 v44, v45, v44, vcc")
    A(f"s_mov_b32 s36, {NS - LEAD}")
    A("s_mov_b32 s37, 0")
    A.lab("L_tk")
    A(f"s_mov_b32 s34, {POLL_LIMIT}")
    A.lab("L_tkw")
    A("ds_read_b128 v[64:67], v46")
    A("s_waitcnt lgkmcnt(0)")
    A("v_max3_u32 v64, v64, v65, v66")
    A("v_max_u32 v64, v64, v67")
    A("s_nop 0")
    A("v_readfirstlane_b32 s29, v64")
    A("s_cmp_ge_u32 s29, s36")
    A("s_cbranch_scc1 L_tkgo")
    A(f"s_sleep {psleep}")
    A("s_sub_u32 s34, s34, 1")
    A("s_cmp_lg_u32 s34, 0")
    A("s_cbranch_scc1 L_tkw")
    A.lab("L_tkgo")
    A("v_mov_b32 v65, 4")
    A("buffer_atomic_add v65, v44, s[12:15], 0 offen sc0 sc1")
    A("s_waitcnt vmcnt(0)")
    A("v_readfirstlane_b32 s29, v65")
    A("s_cmp_lt_u32 s37, 180")
    A(f"s_cselect_b32 s29, s29, {NI - 32*NS}")
    A("v_mov_b32 v65, s29")
    A("ds_write_b32 v47, v65")
    A("v_add_u32 v47, 4, v47")
    A("s_add_u32 s36, s36, 1")
    A("s_add_u32 s37, s37, 1")
    A(f"s_cmp_lt_u32 s29, {NI - 32*NS}")
    A("s_cbranch_scc1 L_tk")

    if not early_fp: emit_fp()

    def engine(label, nitems, nslots, slot0, vaddr, sbase, shift, check, on_valid, smiss_init):
        sM, sC, sT, sO, sN = 60, 61, 62, 63, 34
        sI = 86
        A(f"s_mov_b32 s{sM}, {smiss_init}")
        A(f"s_mov_b32 s{sC}, 0")
        A(f"s_mov_b32 s{sN}, {POLL_LIMIT}")
        def issue(k):
            A(f"s_lshl_b32 s{sT}, -1, s{sC}")
            A(f"s_and_b32 s{sT}, s{sT}, s{sM}")
            A(f"s_cselect_b32 s{sT}, s{sT}, s{sM}")
            A(f"s_ff1_i32_b32 s{sI+k}, s{sT}")
            A(f"s_add_u32 s{sC}, s{sI+k}, 1")
            A(f"s_lshl_b32 s{sO}, s{sI+k}, {shift}")
            A(f"s_add_u32 s{sO}, s{sO}, {sbase}")
            r = slot0 + 4 * k
            A(f"buffer_load_dwordx4 v[{r}:{r+3}], {vaddr}, s[12:15], s{sO} offen sc1")
        for k in range(nslots): issue(k)
        A.lab(label)
        for k in range(nslots):
            r = slot0 + 4 * k
            A(f"s_waitcnt vmcnt({nslots-1})")
            check(r)
            A(f"s_lshl_b32 s{sT}, 1, s{sI+k}")
            A("s_cmp_eq_u64 vcc, -1")
            A(f"s_cselect_b32 s{sT}, s{sT}, 0")
            A(f"s_and_b32 s{sT}, s{sT}, s{sM}")
            A(f"s_cbranch_scc0 {label}_s{k}")
            A(f"s_xor_b32 s{sM}, s{sM}, s{sT}")
            on_valid(r)
            A(f"s_cmp_eq_u32 s{sM}, 0")
            A(f"s_cbranch_scc1 {label}_ok")
            A.lab(f"{label}_s{k}")
            issue(k)
        A(f"s_sub_u32 s{sN}, s{sN}, 1")
        A(f"s_cmp_lg_u32 s{sN}, 0")
        A(f"s_cbranch_scc1 {label}")
        A.lab(label + "_ok")
    A("v_mov_b32 v44, 0")
    A("v_lshlrev_b32 v45, 3, v0")
    A("v_cmp_eq_u32 s[52:53], 1, v33")
    A("v_cmp_eq_u32 s[54:55], 2, v33")
    A("v_cmp_eq_u32 s[56:57], 3, v33")
    A("v_lshlrev_b32 v46, 4, v33")
    A("v_lshlrev_b32 v47, 2, v0")
    A(f"s_mov_b32 s30, {hex(f2u(CSC))}")
    A(f"s_mov_b32 s31, {hex(f2u(-CSC))}")
    A("s_lshl_b32 s29, s2, 10")
    A(f"s_add_u32 s29, s29, {WS_P1}")
    A("s_lshl_b32 s32, s21, 13")
    A(f"s_add_u32 s32, s32, {WS_P1}")
    A("s_lshl_b32 s35, 1, s22")
    A("s_xor_b32 s35, s35, 0xff")
    A("s_waitcnt vmcnt(0)")
    A("s_barrier")
    if prio: A("s_setprio 3")
    ST(4)
    for w in range(4):
        A(f"ds_read_b32 v{80+w}, v44 offset:{L_ML+32*w+16}")
    for w in range(4):
        A(f"ds_read_b128 v[{64+4*w}:{64+4*w+3}], v44 offset:{L_ML+32*w}")
    for w in range(4):
        A(f"ds_read_b64 v[{84+2*w}:{84+2*w+1}], v45 offset:{L_PART+512*w}")
    A("s_waitcnt lgkmcnt(8)")
    A("v_max3_f32 v92, v80, v81, v82")
    A("v_max_f32 v92, v92, v83")
    A("v_mul_f32 v93, s31, v92")
    for w in range(4):
        A(f"v_fma_f32 v{80+w}, v{80+w}, s30, v93")
    for w in range(4):
        A(f"v_exp_f32 v{80+w}, v{80+w}")
    A("s_waitcnt lgkmcnt(4)")
    for w in range(4):
        A(f"v_add_f32 v{64+4*w}, v{64+4*w}, v{64+4*w+1}")
        A(f"v_add_f32 v{64+4*w+2}, v{64+4*w+2}, v{64+4*w+3}")
    for w in range(4):
        A(f"v_add_f32 v{64+4*w}, v{64+4*w}, v{64+4*w+2}")
    A("v_mul_f32 v94, v64, v80")
    for w in range(1, 4):
        A(f"v_fmac_f32 v94, v{64+4*w}, v{80+w}")
    A("s_waitcnt lgkmcnt(0)")
    A("v_rcp_f32 v95, v94")
    A("v_log_f32 v96, v94")
    A("v_mul_f32 v98, v84, v80")
    A("v_mul_f32 v99, v85, v80")
    for w in range(1, 4):
        A(f"v_fmac_f32 v98, v{84+2*w}, v{80+w}")
        A(f"v_fmac_f32 v99, v{85+2*w}, v{80+w}")
    A("v_sub_f32 v96, v96, v93")
    A("v_mul_f32 v98, v98, v95")
    A("v_mul_f32 v99, v99, v95")
    A(f"v_mov_b32 v51, v{hT}")
    A("v_mov_b32 v50, v96")
    A("v_mov_b32 v48, v98"); A("v_mov_b32 v49, v99")
    A("buffer_store_dwordx4 v[48:51], v35, s[12:15], s29 offen sc1")
    A("v_mov_b32 v97, 1.0")
    def chk1(r): A(f"v_cmp_eq_u32 vcc, v{r+3}, v{hT}")
    def val1(r):
        A(f"v_max_f32 v100, v96, v{r+2}")
        A(f"v_sub_f32 v101, v96, v100")
        A(f"v_sub_f32 v102, v{r+2}, v100")
        A("v_exp_f32 v101, v101")
        A("v_exp_f32 v102, v102")
        A("v_mov_b32 v96, v100")
        A("v_mul_f32 v98, v98, v101")
        A("v_mul_f32 v99, v99, v101")
        A("v_fma_f32 v97, v97, v101, v102")
        A(f"v_fmac_f32 v98, v{r}, v102")
        A(f"v_fmac_f32 v99, v{r+1}, v102")
    engine("L_e1", 8, E1, 64, "v35", "s32", 10, chk1, val1, "s35")
    ST(5)
    A("v_rcp_f32 v97, v97")
    A("s_nop 0")
    A("v_mul_f32 v98, v98, v97")
    A("v_mul_f32 v99, v99, v97")
    A("v_cvt_pk_bf16_f32 v98, v98, v99")
    A(f"ds_write_b32 v47, v98 offset:{L_O}")
    A("s_lshl_b32 s29, s21, 12")
    A("s_lshl_b32 s30, s22, 9")
    A("s_add_u32 s29, s29, s30")
    A(f"s_add_u32 s29, s29, {WS_P2}")
    A("v_lshlrev_b32 v45, 3, v0")
    A("s_waitcnt lgkmcnt(0)")
    hA2, hD2 = 104, 128
    for sx in range(4):
        A(f"ds_read_b128 v[{hA2+4*sx}:{hA2+4*sx+3}], v46 offset:{L_O + 64*sx}")
    for sx in range(4):
        A(f"s_waitcnt lgkmcnt({3-sx})")
        for cg in range(4):
            c = "0" if sx == 0 else f"v[{hD2+4*cg}:{hD2+4*cg+3}]"
            A(f"v_mfma_f32_16x16x32_bf16 v[{hD2+4*cg}:{hD2+4*cg+3}], v[{hA2+4*sx}:{hA2+4*sx+3}], v[{hWO+16*cg+4*sx}:{hWO+16*cg+4*sx+3}], {c}")
    A(f"v_mov_b32 v50, v{hT}"); A(f"v_mov_b32 v51, v{hT+1}")
    A("s_nop 5")
    A(f"v_cndmask_b32 v48, v{hD2}, v{hD2+4}, s[52:53]")
    A(f"v_cndmask_b32 v48, v48, v{hD2+8}, s[54:55]")
    A(f"v_cndmask_b32 v48, v48, v{hD2+12}, s[56:57]")
    A("s_nop 1")
    A("v_mov_b32_dpp v49, v48 quad_perm:[1,0,3,2] row_mask:0xf bank_mask:0xf")
    A("s_mov_b32 exec_lo, 0x55555555")
    A("s_mov_b32 exec_hi, 0x55555555")
    A("buffer_store_dwordx4 v[48:51], v45, s[12:15], s29 offen sc1")
    A("s_mov_b64 exec, -1")
    ST(6)
    A("s_and_b32 s29, s21, 7")
    A("s_cmp_lg_u32 s29, s22")
    A("s_cbranch_scc1 L_hend")
    A("v_lshrrev_b32 v45, 3, v0")
    A("v_lshlrev_b32 v45, 12, v45")
    A("v_and_b32 v46, 7, v0")
    A("v_lshl_add_u32 v45, v46, 4, v45")
    A("s_lshl_b32 s32, s21, 7")
    A(f"s_add_u32 s32, s32, {WS_P2}")
    A("v_mov_b32 v52, 0"); A("v_mov_b32 v53, 0")
    def chk2(r): A(f"v_cmp_eq_u64 vcc, v[{r+2}:{r+3}], v[{hT}:{hT+1}]")
    def val2(r):
        A(f"v_add_f32 v52, v52, v{r}")
        A(f"v_add_f32 v53, v53, v{r+1}")
    engine("L_e2", 4, E2, 224, "v45", "s32", 15, chk2, val2, "15")
    A("v_mov_b32 v48, v52"); A("v_mov_b32 v49, v53")
    allreduce(A, "v_add_f32", 48, 44, rors=(8,))
    allreduce(A, "v_add_f32", 49, 44, rors=(8,))
    for (r, g, x) in ((48, 56, 58), (49, 57, 59)):
        rne_hi(A, r, r)
        A(f"v_mul_f32 v{r}, v{r}, v{g}")
        rne_hi(A, r, r)
        A(f"v_add_f32 v{r}, v{r}, v{x}")
    A("v_cvt_pk_bf16_f32 v48, v48, v49")
    A("s_mov_b32 s8, s50"); A("s_mov_b32 s9, s51"); A("s_mov_b32 s10, 1024"); A("s_mov_b32 s11, 0x20000")
    A("s_lshl_b32 s29, s21, 5")
    A("v_lshlrev_b32 v46, 2, v46")
    A("s_mov_b64 exec, 0xff")
    A("buffer_store_dword v48, v46, s[8:11], s29 offen")
    A("s_cmp_lg_u32 s21, 0")
    A("s_cbranch_scc1 L_hend")
    A("s_mov_b64 exec, 1")
    A(f"buffer_store_dwordx2 v[{hT}:{hT+1}], v36, s[12:15], 0 offen sc1")
    A.lab("L_hend")
    A("s_mov_b64 exec, -1")
    A("s_waitcnt vmcnt(0)")
    if stamp:
        stamp_out(A, 1)
    A.lab("L_end")
    A("s_endpgm")

    head = HDR + f"; @launch grid=(256,1,1) block=({NW*64},1,1) lds={LDS_BYTES}\n" + f""".amdgcn_target "amdgcn-amd-amdhsa--gfx950"
.text
.globl {NAME}_kernel
.p2align 8
.type {NAME}_kernel,@function
{NAME}_kernel:
"""
    foot = f""".section .rodata,"a"
.p2align 6
.amdhsa_kernel {NAME}_kernel
  .amdhsa_next_free_vgpr 256
  .amdhsa_next_free_sgpr 102
  .amdhsa_accum_offset 256
  .amdhsa_group_segment_fixed_size 0
  .amdhsa_kernarg_size 96
  .amdhsa_user_sgpr_count 2
  .amdhsa_user_sgpr_kernarg_segment_ptr 1
  .amdhsa_system_sgpr_workgroup_id_x 1
.end_amdhsa_kernel
"""
    return head + A.text() + foot

def stamp_out(A, helper):
    A("s_memrealtime s[84:85]")
    A("s_waitcnt lgkmcnt(0)")
    A("s_mul_i32 s29, s2, 5")
    A("s_add_u32 s29, s29, s20")
    A("s_lshl_b32 s29, s29, 5")
    A(f"s_add_u32 s29, s29, {WS_DBG}")
    for i in range(8):
        A(f"v_mov_b32 v{8+i}, s{70+2*i}")
    A("v_mov_b32 v16, s29")
    A("s_mov_b64 exec, 1")
    A("global_store_dwordx4 v16, v[8:11], s[24:25]")
    A("global_store_dwordx4 v16, v[12:15], s[24:25] offset:16")
    A("s_waitcnt vmcnt(0)")

if __name__ == "__main__":
    kw = eval("dict(" + (sys.argv[2] if len(sys.argv) > 2 else "") + ")")
    open(sys.argv[1], "w").write(gen(**kw))
```

```python
import sys, math, struct

NAME = "recurrent_scan__mha_block_cached__swiglu_ffn__decode"

HDR = """; Kernarg layout for this problem (96 bytes, ptrs only, base s[0:1]):
"""

def f2u(x):
    return struct.unpack("<I", struct.pack("<f", x))[0]

WS_EPOCH = 0x0
WS_TICK  = 0x1000
WS_QP    = 0x10000
WS_P1    = 0x80000
WS_P2    = 0x100000
WS_FP    = 0x140000
WS_DBG   = 0x180000
WS_S1    = 0x1A0000
WS_SIZE  = 0x200000

L_XN = 0
L_Q  = 2048
L_PART = 2304
L_ML = 4352
L_H  = 4480
L_O  = 4608
L_TK = 5120
L_PROG = 5888
L_FT = 6144
L_W = 8192
W_RS = 144
LDS_BYTES = 8192 + 128 * 144

DEAD = 0x10000000
OOBV = 0x7FFFFFF0

SCALE = 128 ** -0.5
LOG2E = 1.4426950408889634
CSC = SCALE * LOG2E

class Em:
    def __init__(self):
        self.L = []
        self.vm = []
    def __call__(self, s):
        self.L.append(s)
    def lab(self, s):
        self.L.append(s + ":")
    def c(self, s):
        self.L.append("; " + s)
    def vmem(self, s, tag):
        self.L.append(s); self.vm.append(tag)
    def wait_tag(self, tag):
        idx = max(i for i, t in enumerate(self.vm) if t == tag)
        n = len(self.vm) - 1 - idx
        assert n <= 63, n
        self.L.append(f"s_waitcnt vmcnt({n})")
        return n
    def text(self):
        out = []
        for x in self.L:
            if x.endswith(":") or x.startswith(";"):
                out.append(x)
            else:
                out.append("    " + x)
        return "\n".join(out) + "\n"

def allreduce(A, op, v, t, rors=(8, 4, 2, 1), x16=True, x32=True):
    for r in rors:
        A("s_nop 1")
        A(f"{op}_dpp v{v}, v{v}, v{v} row_ror:{r} row_mask:0xf bank_mask:0xf")
    if x16:
        A(f"v_mov_b32 v{t}, v{v}")
        A("s_nop 1")
        A(f"v_permlane16_swap_b32 v{v}, v{t}")
        A(f"{op} v{v}, v{v}, v{t}")
    if x32:
        A(f"v_mov_b32 v{t}, v{v}")
        A("s_nop 1")
        A(f"v_permlane32_swap_b32 v{v}, v{t}")
        A(f"{op} v{v}, v{v}, v{t}")

def rne_hi(A, dst, src):
    A(f"v_cvt_pk_bf16_f32 v{dst}, v{src}, v{src}")
    A(f"v_and_b32 v{dst}, 0xffff0000, v{dst}")

def silu(A, dst, src, t):
    A(f"v_mul_f32 v{t}, {hex(f2u(-LOG2E))}, v{src}")
    A(f"v_exp_f32 v{t}, v{t}")
    A("s_nop 0")
    A(f"v_add_f32 v{t}, 1.0, v{t}")
    A(f"v_rcp_f32 v{t}, v{t}")
    A("s_nop 0")
    A(f"v_mul_f32 v{dst}, v{src}, v{t}")

def gen(R=6, F=2, NS=58, HELPER=0, POLL_LIMIT=400000, dbg=False, nt_w="nt", stamp=False, prio=True,
        ffn=1, ffn_nt="nt", ffn_comp=True, ffn_s1=True, ffn_s2=True, gsleep=8, gexp=False,
        LEAD=2, wq_on=True, wo_on=True, psleep=2, cheapq=False, E1=4, E2=4, kpol="nt", vpol="nt", s1sleep=8, early_fp=False, s1pub=True, s1poll=True, fppub=True, s1comp=True, s2on=True, s2lvl=0, qsleep0=0, qsleep=0, lay='head', rot=0, tlbpf=0, tlbpos=1, S=1024, wperm=0, bits=None, xors=(), xmap=None):
    A = Em()
    NW = 5
    WSTREAM = 32
    NI = 2048
    assert F == 2
    A("s_cmp_ge_u32 s2, 256")
    A("s_cbranch_scc1 L_end")
    if xmap is not None:
        assert sorted(xmap) == list(range(8))
        A("s_mov_b32 s3, 0")
        p = 0
        while p < 8:
            k = p
            while k + 1 < 8 and xmap[k + 1] == xmap[k] + 1: k += 1
            A(f"s_bfe_u32 s20, s2, {hex(((k - p + 1) << 16) | p)}")
            A(f"s_lshl_b32 s20, s20, {xmap[p]}")
            A("s_or_b32 s3, s3, s20")
            p = k + 1
        A("s_mov_b32 s2, s3")
    A("v_lshrrev_b32 v1, 6, v0")
    A("v_and_b32 v0, 63, v0")
    A("s_load_dwordx2 s[24:25], s[0:1], 88")
    A("v_readfirstlane_b32 s20, v1")
    A("s_lshr_b32 s21, s2, 3")
    A("s_and_b32 s22, s2, 7")
    def ST(i):
        if stamp: A(f"s_memrealtime s[{70+2*i}:{71+2*i}]")
    if stamp:
        for i in range(8): A(f"s_mov_b32 s{70+2*i}, 0")
    ST(0)
    A(f"s_cmp_eq_u32 s20, {HELPER}")
    A("s_cbranch_scc1 L_helper")

    A("s_load_dwordx4 s[4:7], s[0:1], 8")
    if prio: A("s_setprio 1")
    if HELPER == 0:
        A("s_sub_u32 s23, s20, 1")
    else:
        A("s_mov_b32 s23, s20")
    vL = 0
    vKA, vVA, vCTR, vTICK = 2, 3, 4, 5
    vM = 6
    vO = 12
    vS = 16
    vm, vl = 10, 11
    vT, vU, vNM, vAL = 20, 21, 22, 23
    vP = 24
    vA = 28
    vQ = 44
    vRING = 64
    def kreg(k, u): return vRING + k * 32 + u * 4
    def vreg(k, u): return vRING + k * 32 + 16 + u * 4
    assert vRING + R * 32 <= 256
    sOFF = 40
    A("v_and_b32 v20, 15, v0")
    A("v_lshrrev_b32 v21, 4, v0")
    if bits is None:
        lgS = S.bit_length() - 1
        assert S == 1 << lgS and lgS >= 10
        rest = [b for b in range(10, 23) if b not in (lgS, lgS + 1)]
        bits_ = [8, 9, lgS, lgS + 1] + rest
        if wperm == 1:
            r = rest
            bits_ = [8, 9, lgS, lgS + 1] + [r[3], r[4]] + r[0:3] + r[5:]
    else:
        bits_ = list(bits)
    assert sorted(bits_) == list(range(8, 23)), bits_
    bg, bu, bw, bt = bits_[0:2], bits_[2:4], bits_[4:6], bits_[6:]
    def dep2(val, pos): return ((val & 1) << pos[0]) | ((val >> 1) << pos[1])
    def vdep2(dst, src, pos, tmp):
        A(f"v_and_b32 v{dst}, 1, v{src}")
        A(f"v_lshlrev_b32 v{dst}, {pos[0]}, v{dst}")
        A(f"v_lshrrev_b32 v{tmp}, 1, v{src}")
        A(f"v_lshl_add_u32 v{dst}, v{tmp}, {pos[1]}, v{dst}")
    A("v_and_b32 v22, 3, v20")
    vdep2(23, 22, bu, 24)
    A("v_lshrrev_b32 v22, 2, v20")
    vdep2(25, 22, bg, 24)
    A("v_add_u32 v23, v23, v25")
    A(f"v_lshl_add_u32 v{vKA}, v21, 4, v23")
    vdep2(23, 21, bg, 24)
    A(f"v_lshl_add_u32 v{vVA}, v20, 4, v23")
    vVAu = [vVA, 61, 62, 63]
    bigS = dep2(3, bu) >= 4096
    if bigS:
        for u in range(1, 4):
            A(f"v_add_u32 v{vVAu[u]}, {dep2(u, bu)}, v{vVA}")
    def vaddr(u):
        return (f"v{vVAu[u]}", 0) if bigS else (f"v{vVA}", dep2(u, bu))
    runs = []
    i = 0
    while i < 9:
        k = i
        while k + 1 < 9 and bt[k + 1] == bt[k] + 1: k += 1
        runs.append((i + 2, k - i + 1, bt[i])); i = k + 1
    def item_addr(dst, src, tmp):
        d = dst if (len(runs) == 1 or dst != src) else "s38"
        for ri, (lo, ln, pos) in enumerate(runs):
            t = d if ri == 0 else tmp
            A(f"s_bfe_u32 {t}, {src}, {hex((ln << 16) | lo)}")
            A(f"s_lshl_b32 {t}, {t}, {pos}")
            if ri: A(f"s_add_u32 {d}, {d}, {tmp}")
        if d != dst: A(f"s_mov_b32 {dst}, {d}")
        groups = {}
        for (sb, db) in xors:
            assert sb in bt and db not in bg + bu and sb != db
            groups[sb - db] = groups.get(sb - db, 0) | (1 << db)
        assert not (set(x[0] for x in xors) & set(x[1] for x in xors))
        for sh, m in groups.items():
            if sh > 0: A(f"s_lshr_b32 {tmp}, {dst}, {sh}")
            else: A(f"s_lshl_b32 {tmp}, {dst}, {-sh}")
            A(f"s_and_b32 {tmp}, {tmp}, {hex(m)}")
            A(f"s_xor_b32 {dst}, {dst}, {tmp}")
    A("v_and_b32 v22, 1, v20")
    A("v_mov_b32 v23, 0xffff")
    A("v_mov_b32 v24, 0xffff0000")
    A("v_cmp_eq_u32 vcc, 1, v22")
    A("v_lshrrev_b32 v25, 1, v20")
    A("s_nop 0")
    A("v_cndmask_b32 v23, v23, v24, vcc")
    for d in range(4):
        A(f"v_cmp_eq_u32 vcc, {d}, v25")
        A("s_nop 1")
        A(f"v_cndmask_b32 v{vM+d}, 0, v23, vcc")
    A(f"v_mov_b32 v{vm}, 0xff800000")
    A(f"v_mov_b32 v{vl}, 0")
    for i in range(4): A(f"v_mov_b32 v{vO+i}, 0")
    A(f"s_mov_b32 s30, {hex(f2u(CSC))}")
    A(f"s_mov_b32 s31, {hex(f2u(-CSC))}")
    A("s_lshl_b32 s26, s21, 23")
    A("s_and_b32 s29, s23, 1"); A(f"s_lshl_b32 s29, s29, {bw[0]}"); A("s_add_u32 s26, s26, s29")
    A("s_lshr_b32 s29, s23, 1"); A(f"s_lshl_b32 s29, s29, {bw[1]}"); A("s_add_u32 s26, s26, s29")
    RS = 32 if lay == "head" else 4
    if lay == "head":
        A("s_lshl_b32 s27, s22, 2")
    else:
        A(f"s_mul_i32 s27, s22, {4*NS}")
    A("s_add_u32 s27, s27, s23")
    if rot:
        A(f"s_mul_i32 s36, s21, {rot}")
    A("s_waitcnt lgkmcnt(0)")
    A("s_mov_b32 s8, s4"); A("s_mov_b32 s9, s5"); A(f"s_mov_b32 s10, {hex(DEAD)}"); A("s_mov_b32 s11, 0x20000")
    A("s_mov_b32 s12, s6"); A("s_mov_b32 s13, s7"); A(f"s_mov_b32 s14, {hex(DEAD)}"); A("s_mov_b32 s15, 0x20000")
    if dbg:
        A("s_mov_b32 s16, s24"); A("s_mov_b32 s17, s25"); A("s_mov_b32 s18, 0"); A("s_mov_b32 s19, 0x20000")
    A("s_barrier")

    def static_off(n):
        k = n % R
        A(f"s_add_u32 s29, s27, {RS*n}")
        if rot:
            A("s_add_u32 s29, s29, s36")
            A("s_and_b32 s29, s29, 2047")
        item_addr("s29", "s29", "s33")
        A(f"s_xor_b32 s{sOFF+k}, s29, s26")
    def issueK(n):
        k = n % R
        for u in range(4):
            r = kreg(k, u)
            A.vmem(f"buffer_load_dwordx4 v[{r}:{r+3}], v{vKA}, s[8:11], s{sOFF+k} offen offset:{u*64} {kpol}", ("K", n))
    def issueV(n):
        k = n % R
        for u in range(4):
            r = vreg(k, u)
            va, of = vaddr(u)
            A.vmem(f"buffer_load_dwordx4 v[{r}:{r+3}], {va}, s[12:15], s{sOFF+k} offen offset:{of} {vpol}", ("V", n))
    def qk_mfma(n):
        k = n % R
        for u in range(4):
            r = kreg(k, u)
            c = "0" if u == 0 else f"v[{vS}:{vS+3}]"
            A(f"v_mfma_f32_16x16x32_bf16 v[{vS}:{vS+3}], v[{r}:{r+3}], v[{vQ+4*u}:{vQ+4*u+3}], {c}")
    def softmax(n, pad):
        if pad > 0: A(f"s_nop {pad-1}")
        A(f"v_max3_f32 v{vT}, v{vS}, v{vS+1}, v{vS+2}")
        A(f"v_max_f32 v{vT}, v{vT}, v{vS+3}")
        A(f"v_mov_b32 v{vU}, v{vT}")
        A("s_nop 1")
        A(f"v_permlane16_swap_b32 v{vT}, v{vU}")
        A(f"v_max_f32 v{vT}, v{vT}, v{vU}")
        A(f"v_mov_b32 v{vU}, v{vT}")
        A("s_nop 1")
        A(f"v_permlane32_swap_b32 v{vT}, v{vU}")
        A(f"v_max3_f32 v{vT}, v{vT}, v{vU}, v{vm}")
        A(f"v_mul_f32 v{vNM}, s31, v{vT}")
        A(f"v_fma_f32 v{vAL}, v{vm}, s30, v{vNM}")
        for i in range(4):
            A(f"v_fma_f32 v{vP+i}, v{vS+i}, s30, v{vNM}")
        A(f"v_exp_f32 v{vAL}, v{vAL}")
        for i in range(4):
            A(f"v_exp_f32 v{vP+i}, v{vP+i}")
        A(f"v_mov_b32 v{vm}, v{vT}")
        for i in range(4):
            A(f"v_mul_f32 v{vO+i}, v{vO+i}, v{vAL}")
        A(f"v_add_f32 v{vT}, v{vP}, v{vP+1}")
        A(f"v_add_f32 v{vU}, v{vP+2}, v{vP+3}")
        for i in range(4):
            A(f"v_cvt_pk_bf16_f32 v{vP+i}, v{vP+i}, v{vP+i}")
        A(f"v_add_f32 v{vT}, v{vT}, v{vU}")
        A(f"v_fma_f32 v{vl}, v{vl}, v{vAL}, v{vT}")
        for i in range(4):
            for d in range(4):
                A(f"v_and_b32 v{vA+4*i+d}, v{vP+i}, v{vM+d}")
    def pv_mfma(n):
        k = n % R
        for u in range(4):
            r = vreg(k, u)
            A(f"v_mfma_f32_16x16x32_bf16 v[{vO}:{vO+3}], v[{vA+4*u}:{vA+4*u+3}], v[{r}:{r+3}], v[{vO}:{vO+3}]")

    units = []
    def issue_unit(u):
        n = u // 2
        if u % 2 == 0:
            static_off(n); issueK(n)
        else:
            issueV(n)
    def land_unit(u):
        A.wait_tag(("K" if u % 2 == 0 else "V", u // 2))
    for u in range(F): issue_unit(u)
    for u in range(2 * R - F):
        land_unit(u); issue_unit(u + F)
    ST(1)
    A("s_barrier")
    ST(2)
    A("v_lshrrev_b32 v20, 4, v0")
    A("v_lshlrev_b32 v20, 4, v20")
    for s in range(4):
        A(f"ds_read_b128 v[{vQ+4*s}:{vQ+4*s+3}], v20 offset:{L_Q + s*64}")
    A("s_waitcnt lgkmcnt(0)")
    P = 0; I = 2 * R; Ld = 2 * R - F
    def proc_unit(u):
        n = u // 2
        if u % 2 == 0:
            qk_mfma(n); softmax(n, 8)
        else:
            A("s_nop 1")
            pv_mfma(n)
    state_ok = lambda: (P == Ld and P % 2 == 0 and I == P + F)
    steps = 0
    while not state_ok():
        steps += 1
        assert steps < 100
        while P <= I - 2 * R:
            proc_unit(P); P += 1
        if I - Ld < F or True:
            land_unit(Ld); Ld += 1
            issue_unit(I); I += 1
        k = 0
        while P < Ld and k < 2:
            proc_unit(P); P += 1; k += 1
        if P == Ld and P % 2 == 1:
            land_unit(Ld); Ld += 1
            issue_unit(I); I += 1
            proc_unit(P); P += 1
    n0 = P // 2
    assert I == 2 * n0 + 2
    A.c(f"catch-up done: loop starts at item {n0}, slot {n0 % R}")
    ST(3)
    assert n0 + 2 <= NS
    POOL = NI - 32 * NS
    vTKD = 60
    A(f"s_add_u32 s27, s27, {RS*(n0+1)}")
    A(f"s_mov_b32 s28, {n0+1}")
    A(f"v_mov_b32 v{vCTR}, {L_TK - 4*(NS - (n0+2))}")
    A(f"v_mov_b32 v{vTICK}, {n0+1}")
    A("s_lshl_b32 s29, s23, 2")
    A(f"s_add_u32 s29, s29, {L_PROG}")
    A("v_mov_b32 v1, s29")
    A(f"s_add_u32 s35, s23, {32*NS}")
    if dbg:
        A("s_mov_b32 s60, 0"); A("s_mov_b32 s61, 0")
    A.lab("L_loop")
    spins = []
    for kk in range(R):
        n = n0 + kk
        k = n % R; k2 = (n + 1) % R
        A.c(f"--- item slot {k}")
        A(f"s_cmp_ge_u32 s{sOFF+k}, {hex(DEAD)}")
        A("s_cbranch_scc1 L_fin")
        A(f"s_cmp_lt_u32 s28, {NS}")
        A(f"s_cbranch_scc1 L_stat{kk}")
        A("s_waitcnt lgkmcnt(0)")
        A(f"v_readfirstlane_b32 s29, v{vTKD}")
        A("s_cmp_eq_u32 s29, -1")
        A(f"s_cbranch_scc1 L_spin{kk}")
        A.lab(f"L_back{kk}")
        A("s_add_u32 s27, s29, s35")
        A.lab(f"L_stat{kk}")
        if rot:
            A("s_add_u32 s33, s27, s36")
            A("s_and_b32 s33, s33, 2047")
            item_addr("s33", "s33", "s37")
        else:
            item_addr("s33", "s27", "s37")
        A("s_xor_b32 s33, s33, s26")
        A(f"s_cmp_lt_u32 s27, {NI}")
        A(f"s_cselect_b32 s{sOFF+k2}, s33, {hex(DEAD)}")
        if dbg:
            A("s_cselect_b32 s62, s27, 0")
            A("s_cselect_b32 s63, 1, 0")
            A("s_add_u32 s60, s60, s62")
            A("s_add_u32 s61, s61, s63")
        A(f"s_add_u32 s27, s27, {RS}")
        A("s_add_u32 s28, s28, 1")
        A("s_waitcnt vmcnt(4)")
        for u in range(4):
            r = kreg(k2, u)
            A(f"buffer_load_dwordx4 v[{r}:{r+3}], v{vKA}, s[8:11], s{sOFF+k2} offen offset:{u*64} {kpol}")
        A(f"ds_write_b32 v1, v{vTICK}")
        A(f"ds_read_b32 v{vTKD}, v{vCTR}")
        qk_mfma(n)
        A(f"v_add_u32 v{vTICK}, 1, v{vTICK}")
        A(f"v_add_u32 v{vCTR}, 4, v{vCTR}")
        softmax(n, 6)
        A("s_waitcnt vmcnt(4)")
        for u in range(4):
            r = vreg(k2, u)
            va, of = vaddr(u)
            A(f"buffer_load_dwordx4 v[{r}:{r+3}], {va}, s[12:15], s{sOFF+k2} offen offset:{of} {vpol}")
        pv_mfma(n)
        spins.append(kk)
    A("s_branch L_loop")
    for kk in spins:
        A.lab(f"L_spin{kk}")
        A(f"s_mov_b32 s34, {POLL_LIMIT}")
        A(f"v_add_u32 v{vT}, -4, v{vCTR}")
        A.lab(f"L_spin{kk}_l")
        A(f"ds_read_b32 v{vTKD}, v{vT}")
        A("s_waitcnt lgkmcnt(0)")
        A(f"v_readfirstlane_b32 s29, v{vTKD}")
        A("s_cmp_lg_u32 s29, -1")
        A(f"s_cbranch_scc1 L_back{kk}")
        A("s_sleep 1")
        A("s_sub_u32 s34, s34, 1")
        A("s_cmp_lg_u32 s34, 0")
        A(f"s_cbranch_scc1 L_spin{kk}_l")
        A(f"s_mov_b32 s29, {POOL}")
        A(f"s_branch L_back{kk}")
    A.lab("L_fin")
    A("s_nop 7")
    A("v_lshrrev_b32 v20, 4, v0")
    A("v_and_b32 v21, 15, v0")
    A("s_lshl_b32 s29, s23, 5")
    A(f"s_add_u32 s29, s29, {L_ML}")
    A("v_lshlrev_b32 v22, 2, v20")
    A("v_add_u32 v22, s29, v22")
    A(f"ds_write_b32 v22, v{vl}")
    A("v_mov_b32 v22, s29")
    A(f"ds_write_b32 v22, v{vm} offset:16")
    A("s_lshl_b32 s29, s23, 9")
    A(f"s_add_u32 s29, s29, {L_PART}")
    A("v_lshlrev_b32 v22, 5, v21")
    A("v_lshl_add_u32 v22, v20, 4, v22")
    A("v_add_u32 v22, s29, v22")
    A("s_mov_b32 exec_hi, 0")
    A(f"ds_write_b128 v22, v[{vO}:{vO+3}]")
    A("s_mov_b32 exec_hi, -1")
    ST(4)
    A("s_waitcnt lgkmcnt(0)")
    A("s_barrier")
    ST(5)
    A("s_waitcnt vmcnt(0)")
    if dbg:
        A("s_lshl_b32 s29, s2, 2")
        A("s_add_u32 s29, s29, s23")
        A("s_lshl_b32 s29, s29, 3")
        A(f"s_add_u32 s29, s29, {WS_DBG + 0x10000}")
        A("v_mov_b32 v8, s60"); A("v_mov_b32 v9, s61"); A("v_mov_b32 v12, 0")
        A(f"s_mov_b32 s18, {hex(WS_SIZE)}")
        A("s_mov_b64 exec, 1")
        A("buffer_store_dwordx2 v[8:9], v12, s[16:19], s29 offen")
        A("s_waitcnt vmcnt(0)")
    if stamp:
        stamp_out(A, 0)
    A("s_endpgm")

    A.lab("L_helper")
    A.vm = []
    A("s_load_dwordx2 s[4:5], s[0:1], 0")
    A("s_load_dwordx4 s[36:39], s[0:1], 24")
    A("s_load_dwordx4 s[44:47], s[0:1], 48")
    A("s_load_dwordx4 s[48:51], s[0:1], 64")
    if tlbpf: A("s_load_dwordx4 s[40:43], s[0:1], 8")
    if prio: A("s_setprio 3")
    hE = 2
    hT = 4
    hX = 8
    hF = 12
    hW = 64
    hM = 20
    hD = 28
    A("v_and_b32 v32, 15, v0")
    A("v_lshrrev_b32 v33, 4, v0")
    A("s_lshl_b32 s29, s22, 19")
    A("s_lshl_b32 s30, s21, 8")
    A("s_add_u32 s29, s29, s30")
    A("v_lshlrev_b32 v34, 17, v33")
    A("v_lshl_add_u32 v34, v32, 4, v34")
    A("v_add_u32 v34, s29, v34")
    A("v_lshlrev_b32 v35, 4, v0")
    A("v_mov_b32 v36, 0")
    A("s_waitcnt lgkmcnt(0)")
    A("s_mov_b32 s12, s24"); A("s_mov_b32 s13, s25"); A(f"s_mov_b32 s14, {hex(WS_SIZE)}"); A("s_mov_b32 s15, 0x20000")
    A("s_mov_b32 s8, s4"); A("s_mov_b32 s9, s5"); A("s_mov_b32 s10, 1024"); A("s_mov_b32 s11, 0x20000")
    A("s_mov_b32 s16, s36"); A("s_mov_b32 s17, s37"); A(f"s_mov_b32 s18, {512*8192}"); A("s_mov_b32 s19, 0x20000")
    A.vmem(f"buffer_load_dwordx4 v[{hX}:{hX+3}], v35, s[8:11], 0 offen", "x")
    A.vmem(f"buffer_load_dwordx2 v[{hE}:{hE+1}], v36, s[12:15], 0 offen sc1", "E")
    for i in range(16):
        A(f"s_mov_b32 s29, {i*8192}")
        if wq_on or i == 0: A.vmem(f"buffer_load_dwordx4 v[{hW+4*i}:{hW+4*i+3}], v34, s[16:19], s29 offen {nt_w}", "wq")
    A("s_barrier")
    A("s_cmp_lg_u32 s22, 0")
    A("s_cbranch_scc1 L_nozero")
    A("s_lshl_b32 s29, s21, 7")
    A(f"s_add_u32 s29, s29, {WS_TICK}")
    A("s_mov_b64 exec, 1")
    A("buffer_store_dword v36, v36, s[12:15], s29 offen sc1")
    A("s_mov_b64 exec, -1")
    A.lab("L_nozero")
    A("v_lshlrev_b32 v37, 2, v0")
    A("v_mov_b32 v38, -1")
    for q in range(3):
        A(f"ds_write_b32 v37, v38 offset:{L_TK + 256*q}")
    A(f"ds_write_b32 v37, v36 offset:{L_PROG}")
    A("v_and_b32 v37, 1, v32")
    A("v_mov_b32 v38, 0xffff")
    A("v_mov_b32 v39, 0xffff0000")
    A("v_cmp_eq_u32 vcc, 1, v37")
    A("v_lshrrev_b32 v40, 1, v32")
    A("v_and_b32 v41, 3, v40")
    A("v_cndmask_b32 v38, v38, v39, vcc")
    for d in range(4):
        A(f"v_cmp_eq_u32 vcc, {d}, v40")
        A("s_nop 1")
        A(f"v_cndmask_b32 v{hM+d}, 0, v38, vcc")
        A(f"v_cmp_eq_u32 vcc, {d}, v41")
        A("s_nop 1")
        A(f"v_cndmask_b32 v{hM+4+d}, 0, v38, vcc")
    ST(1)
    A(f"s_waitcnt vmcnt({16 if wq_on else 1})")
    for q in range(4):
        A(f"v_lshlrev_b32 v{hF+2*q}, 16, v{hX+q}")
        A(f"v_and_b32 v{hF+2*q+1}, 0xffff0000, v{hX+q}")
    A(f"v_add_co_u32 v{hT}, vcc, 1, v{hE}")
    A("s_nop 1")
    A(f"v_addc_co_u32 v{hT+1}, vcc, 0, v{hE+1}, vcc")
    A(f"v_add_f32 v42, v{hF}, v{hF+1}")
    for q in range(2, 8):
        A(f"v_add_f32 v42, v42, v{hF+q}")
    allreduce(A, "v_add_f32", 42, 43)
    A(f"v_mul_f32 v42, {hex(f2u(1/512))}, v42")
    A(f"v_sub_f32 v44, v{hF}, v42")
    A("v_mul_f32 v45, v44, v44")
    for q in range(1, 8):
        A(f"v_sub_f32 v44, v{hF+q}, v42")
        A("v_fmac_f32 v45, v44, v44")
    allreduce(A, "v_add_f32", 45, 43)
    A(f"v_mul_f32 v45, {hex(f2u(1/512))}, v45")
    rne_hi(A, 42, 42)
    rne_hi(A, 45, 45)
    A(f"v_add_f32 v45, {hex(f2u(1e-5))}, v45")
    rne_hi(A, 45, 45)
    A("v_sqrt_f32 v45, v45")
    A("s_nop 0")
    rne_hi(A, 45, 45)
    A("v_rcp_f32 v46, v45")
    for q in range(8):
        A(f"v_sub_f32 v{hF+q}, v{hF+q}, v42")
        rne_hi(A, hF + q, hF + q)
        A(f"v_mul_f32 v44, v{hF+q}, v46")
        A(f"v_fma_f32 v47, -v44, v45, v{hF+q}")
        A(f"v_fma_f32 v44, v47, v46, v44")
        rne_hi(A, hF + q, 44)
    A("v_lshlrev_b32 v44, 5, v0")
    A(f"ds_write_b128 v44, v[{hF}:{hF+3}] offset:{L_XN}")
    A(f"ds_write_b128 v44, v[{hF+4}:{hF+7}] offset:{L_XN+16}")
    A("s_lshl_b32 s29, s22, 8")
    A("v_lshlrev_b32 v44, 6, v33")
    A("v_add_u32 v44, s29, v44")
    A("s_waitcnt lgkmcnt(0)")
    hXA = 128
    for q in range(4):
        A(f"ds_read_b128 v[{hXA+4*q}:{hXA+4*q+3}], v44 offset:{L_XN+16*q}")
    A("s_waitcnt lgkmcnt(0)")
    for i in range(16):
        A(f"v_cvt_pk_bf16_f32 v{hXA+i}, v{hXA+i}, v{hXA+i}")
    A("s_waitcnt vmcnt(0)")
    ST(2)
    hA = 144
    for i in range(16):
        a = hA + 4 * (i & 1)
        for d in range(4):
            A(f"v_and_b32 v{a+d}, v{hXA+i}, v{hM+d}")
        A("s_nop 1")
        c = "0" if i == 0 else f"v[{hD}:{hD+3}]"
        A(f"v_mfma_f32_16x16x32_bf16 v[{hD}:{hD+3}], v[{a}:{a+3}], v[{hW+4*i}:{hW+4*i+3}], {c}")
    A("s_lshl_b32 s29, s2, 10")
    A(f"s_add_u32 s29, s29, {WS_QP}")
    A("v_and_b32 v44, 1, v33")
    A("v_lshlrev_b32 v44, 5, v44")
    A("v_lshrrev_b32 v45, 1, v33")
    A("v_lshl_add_u32 v44, v45, 4, v44")
    A("v_lshl_add_u32 v6, v32, 6, v44")
    A("s_nop 3")
    def publish1(dreg, vaddr, soff):
        A(f"v_permlane32_swap_b32 v{dreg}, v{dreg+2}")
        A(f"v_permlane32_swap_b32 v{dreg+1}, v{dreg+3}")
        A(f"v_mov_b32 v50, v{hT}"); A(f"v_mov_b32 v51, v{hT+1}")
        A(f"v_mov_b32 v48, v{dreg}"); A(f"v_mov_b32 v49, v{dreg+1}")
        A(f"buffer_store_dwordx4 v[48:51], v{vaddr}, s[12:15], {soff} offen sc1")
    publish1(hD, 6, "s29")
    def poll(label, loads, nregs_tagpairs, extra_ok=None, sleep=0):
        A(f"s_mov_b32 s34, {POLL_LIMIT}")
        A.lab(label)
        loads()
        A("s_waitcnt vmcnt(0)")
        A("s_mov_b64 s[30:31], -1")
        for idx, tp in enumerate(nregs_tagpairs):
            A(f"v_cmp_eq_u64 vcc, v[{tp}:{tp+1}], v[{hT}:{hT+1}]")
            if extra_ok and idx in extra_ok:
                A(f"s_or_b64 vcc, vcc, {extra_ok[idx]}")
            A("s_and_b64 s[30:31], s[30:31], vcc")
        A("s_cmp_eq_u64 s[30:31], -1")
        A(f"s_cbranch_scc1 {label}_ok")
        if sleep: A(f"s_sleep {sleep}")
        A("s_sub_u32 s34, s34, 1")
        A("s_cmp_lg_u32 s34, 0")
        A(f"s_cbranch_scc1 {label}")
        A.lab(label + "_ok")
    hG = 64
    A("s_lshl_b32 s29, s21, 13")
    A(f"s_add_u32 s29, s29, {WS_QP}")
    def qloads():
        for jj in range(8):
            A(f"s_add_u32 s33, s29, {jj*1024}")
            A(f"buffer_load_dwordx4 v[{hG+4*jj}:{hG+4*jj+3}], v35, s[12:15], s33 offen sc1")
    if cheapq:
        A("v_lshlrev_b32 v45, 10, v0")
        A("v_add_u32 v45, 1008, v45")
        A(f"v_mov_b32 v46, {hex(OOBV)}")
        A("v_cmp_gt_u32 vcc, 8, v0")
        A("s_nop 1")
        A("v_cndmask_b32 v45, v46, v45, vcc")
        A("s_mov_b32 s52, 0xffffff00"); A("s_mov_b32 s53, -1")
        def qpre():
            A(f"buffer_load_dwordx4 v[{hG}:{hG+3}], v45, s[12:15], s29 offen sc1")
        poll("L_pq0", qpre, [hG + 2], extra_ok={0: "s[52:53]"}, sleep=psleep)
    if qsleep0: A(f"s_sleep {qsleep0}")
    poll("L_pq", qloads, [hG + 4 * jj + 2 for jj in range(8)], sleep=qsleep)
    A(f"v_add_f32 v44, v{hG}, v{hG+4}")
    A(f"v_add_f32 v45, v{hG+1}, v{hG+5}")
    for jj in range(2, 8):
        A(f"v_add_f32 v44, v44, v{hG+4*jj}")
        A(f"v_add_f32 v45, v45, v{hG+4*jj+1}")
    A("v_cvt_pk_bf16_f32 v44, v44, v45")
    A("v_lshlrev_b32 v45, 2, v0")
    A(f"ds_write_b32 v45, v44 offset:{L_Q}")
    A("s_waitcnt lgkmcnt(0)")
    ST(3)
    A("s_barrier")
    if prio: A("s_setprio 0")
    def tlb_touch():
        npg = 8192 // tlbpf
        assert npg <= 64
        A(f"v_mul_u32_u24 v44, {tlbpf*1024}, v0")
        A(f"v_mov_b32 v45, {hex(OOBV)}")
        A(f"v_cmp_gt_u32 vcc, {npg}, v0")
        A("s_lshl_b32 s29, s21, 23")
        A("v_cndmask_b32 v44, v45, v44, vcc")
        A("s_mov_b32 s8, s40"); A("s_mov_b32 s9, s41"); A(f"s_mov_b32 s10, {hex(DEAD)}"); A("s_mov_b32 s11, 0x20000")
        A("buffer_load_dword v60, v44, s[8:11], s29 offen nt")
        A("s_mov_b32 s8, s42"); A("s_mov_b32 s9, s43")
        A("buffer_load_dword v61, v44, s[8:11], s29 offen nt")
    if tlbpf and tlbpos == 1: tlb_touch()

    A("s_and_b32 s29, s2, 7")
    A("s_lshl_b32 s29, s29, 1")
    A("s_bfe_u32 s30, s2, 0x10003")
    A("s_or_b32 s58, s29, s30")
    A("s_lshr_b32 s59, s2, 4")
    A("s_cmp_ge_u32 s58, 11")
    A("s_cbranch_scc1 L_nos1")
    if not ffn: A("s_branch L_nos1")
    A("s_mov_b32 s8, s44"); A("s_mov_b32 s9, s45"); A(f"s_mov_b32 s10, {512*2752}"); A("s_mov_b32 s11, 0x20000")
    A("s_mov_b32 s16, s46"); A("s_mov_b32 s17, s47"); A(f"s_mov_b32 s18, {512*2752}"); A("s_mov_b32 s19, 0x20000")
    A("s_and_b32 s31, s59, 1")
    A("s_lshr_b32 s30, s59, 1")
    A("s_lshl_b32 s30, s30, 6")
    A("s_add_u32 s30, s30, s31")
    A("v_lshlrev_b32 v44, 4, v33")
    A("v_add_u32 v44, s30, v44")
    A("v_lshlrev_b32 v47, 2, v44")
    A("v_mul_u32_u24 v44, 2752, v44")
    A("v_lshl_add_u32 v44, v32, 4, v44")
    A("s_lshl_b32 s33, s58, 7")
    A("s_lshl_b32 s34, s31, 5")
    A("s_sub_u32 s33, s33, s34")
    A("v_lshlrev_b32 v45, 3, v32")
    A("v_add_u32 v45, s33, v45")
    A("s_lshl_b32 s33, s33, 1")
    A("v_add_u32 v44, s33, v44")
    A(f"v_mov_b32 v46, {hex(OOBV)}")
    A("v_cmp_gt_u32 vcc, 1376, v45")
    A("s_nop 1")
    A("v_cndmask_b32 v44, v46, v44, vcc")
    for i in range(8):
        A(f"s_mov_b32 s33, {2*i*2752}")
        if ffn_s1:
            A(f"buffer_load_dwordx4 v[{64+4*i}:{64+4*i+3}], v44, s[8:11], s33 offen {ffn_nt}")
            A(f"buffer_load_dwordx4 v[{96+4*i}:{96+4*i+3}], v44, s[16:19], s33 offen {ffn_nt}")
    for q in range(4):
        A(f"ds_read2_b32 v[{128+2*q}:{129+2*q}], v47 offset0:{L_XN//4 + 4*q} offset1:{L_XN//4 + 4*q + 2}")
    for d in range(4):
        A(f"v_xor_b32 v{hM+4+d}, v{hM+4+d}, v{hM+d}")
    A("v_and_b32 v45, 1, v33")
    A("v_lshlrev_b32 v45, 5, v45")
    A("v_lshrrev_b32 v46, 1, v33")
    A("v_lshl_add_u32 v45, v46, 4, v45")
    A("v_and_b32 v46, 3, v32")
    A("v_lshl_add_u32 v45, v46, 6, v45")
    A("v_lshrrev_b32 v46, 2, v32")
    A("v_lshl_add_u32 v45, v46, 9, v45")
    A("s_mul_i32 s29, s59, 22528")
    A("s_lshl_b32 s30, s58, 11")
    A("s_add_u32 s29, s29, s30")
    A(f"s_add_u32 s29, s29, {WS_S1}")
    A("s_waitcnt lgkmcnt(0)")
    for i in range(8):
        A(f"v_cvt_pk_bf16_f32 v{128+i}, v{128+i}, v{128+i}")
    A("s_waitcnt vmcnt(0)")
    for i in range(8):
        for mtx in range(2):
            a = hA + 4 * mtx
            for d in range(4):
                A(f"v_and_b32 v{a+d}, v{128+i}, v{hM+4*mtx+d}")
            A("s_nop 1")
            c = "0" if (i == 0 and mtx == 0) else f"v[{hD}:{hD+3}]"
            w = 64 + 32 * mtx + 4 * i
            A(f"v_mfma_f32_16x16x32_bf16 v[{hD}:{hD+3}], v[{a}:{a+3}], v[{w}:{w+3}], {c}")
    A(f"v_mov_b32 v50, v{hT}"); A(f"v_mov_b32 v51, v{hT+1}")
    A(f"v_mov_b32 v54, v{hT}"); A(f"v_mov_b32 v55, v{hT+1}")
    A("s_nop 7")
    A(f"v_permlane32_swap_b32 v{hD}, v{hD+1}")
    A(f"v_permlane32_swap_b32 v{hD+2}, v{hD+3}")
    A("s_nop 1")
    A(f"v_mov_b32 v48, v{hD}"); A(f"v_mov_b32 v49, v{hD+1}")
    A(f"v_mov_b32 v52, v{hD+2}"); A(f"v_mov_b32 v53, v{hD+3}")
    if s1pub:
        A("buffer_store_dwordx4 v[48:51], v45, s[12:15], s29 offen sc1")
        A("buffer_store_dwordx4 v[52:55], v45, s[12:15], s29 offen offset:256 sc1")
    A.lab("L_nos1")

    A("s_mov_b32 s16, s38"); A("s_mov_b32 s17, s39"); A(f"s_mov_b32 s18, {4096*1024}"); A("s_mov_b32 s19, 0x20000")
    hWO = 160
    A("v_lshrrev_b32 v44, 3, v0")
    A("v_lshlrev_b32 v44, 14, v44")
    A("v_and_b32 v45, 7, v0")
    A("v_lshl_add_u32 v44, v45, 4, v44")
    A("s_lshl_b32 s29, s21, 17")
    A("s_lshl_b32 s30, s22, 7")
    A("s_add_u32 s29, s29, s30")
    for i in range(16):
        A(f"s_add_u32 s33, s29, {i*1024}")
        if wo_on: A(f"buffer_load_dwordx4 v[{hWO+4*i}:{hWO+4*i+3}], v44, s[16:19], s33 offen {nt_w}")
    A("v_lshrrev_b32 v44, 3, v0")
    A(f"v_mul_u32_u24 v44, {16*W_RS}, v44")
    A("v_and_b32 v45, 7, v0")
    A("v_lshl_add_u32 v44, v45, 4, v44")
    A("s_waitcnt vmcnt(0)")
    for i in range(16):
        A(f"ds_write_b128 v44, v[{hWO+4*i}:{hWO+4*i+3}] offset:{L_W + i*W_RS}")
        if i % 8 == 7: A("s_waitcnt lgkmcnt(0)")
    A(f"v_mul_u32_u24 v44, {8*W_RS}, v33")
    A("v_lshl_add_u32 v44, v32, 1, v44")
    for cg in range(4):
        for sx in range(4):
            for e in range(8):
                A(f"ds_read_u16 v{64+e}, v44 offset:{L_W + (32*sx + e)*W_RS + 32*cg}")
            A("s_waitcnt lgkmcnt(0)")
            for d in range(4):
                A(f"v_lshl_or_b32 v{hWO + 16*cg + 4*sx + d}, v{64+2*d+1}, 16, v{64+2*d}")

    A("s_cmp_lt_u32 s58, 11")
    A("s_cbranch_scc1 L_noffn")
    A("s_sub_u32 s35, s58, 11")
    A("s_lshl_b32 s35, s35, 4")
    A("s_add_u32 s35, s35, s59")
    A("s_cmp_ge_u32 s35, 43")
    A("s_cbranch_scc1 L_noffn")
    if not ffn or not s2on: A("s_branch L_noffn")
    hAG = 12
    hAU = 56
    def wait_prog(label, level):
        A(f"v_mov_b32 v46, {L_PROG}")
        A(f"s_mov_b32 s34, {POLL_LIMIT}")
        A.lab(label)
        A("ds_read_b128 v[64:67], v46")
        A("s_waitcnt lgkmcnt(0)")
        A("v_max3_u32 v64, v64, v65, v66")
        A("v_max_u32 v64, v64, v67")
        A("s_nop 0")
        A("v_readfirstlane_b32 s29, v64")
        A(f"s_cmp_ge_u32 s29, {level}")
        A(f"s_cbranch_scc1 {label}_ok")
        A("s_sleep 8")
        A("s_sub_u32 s34, s34, 1")
        A("s_cmp_lg_u32 s34, 0")
        A(f"s_cbranch_scc1 {label}")
        A.lab(label + "_ok")
    if s2lvl: wait_prog("L_w2", s2lvl)
    A("v_lshrrev_b32 v44, 5, v0")
    A(f"v_mul_u32_u24 v44, {22528+512}, v44")
    A("v_and_b32 v45, 31, v0")
    A("v_lshl_add_u32 v44, v45, 4, v44")
    A("s_lshl_b32 s29, s35, 9")
    A(f"s_add_u32 s29, s29, {WS_S1}")
    def s1loads():
        for k in range(8):
            A(f"s_add_u32 s33, s29, {2*k*22528}")
            A(f"buffer_load_dwordx4 v[{64+4*k}:{64+4*k+3}], v44, s[12:15], s33 offen sc1")
    if s1poll: poll("L_ps1", s1loads, [64 + 4 * k + 2 for k in range(8)], sleep=s1sleep)
    A("v_add_f32 v12, v64, v68"); A("v_add_f32 v13, v65, v69")
    for k in range(2, 8):
        A(f"v_add_f32 v12, v12, v{64+4*k}"); A(f"v_add_f32 v13, v13, v{64+4*k+1}")
    allreduce(A, "v_add_f32", 12, 46, rors=(), x16=False)
    allreduce(A, "v_add_f32", 13, 46, rors=(), x16=False)
    rne_hi(A, 12, 12)
    silu(A, 12, 12, 46)
    rne_hi(A, 12, 12)
    rne_hi(A, 13, 13)
    A("v_mul_f32 v12, v12, v13")
    rne_hi(A, 12, 12)
    A("v_bfe_u32 v46, v45, 2, 2")
    A("v_lshlrev_b32 v46, 3, v46")
    A("v_bfe_u32 v47, v45, 1, 1")
    A("v_lshl_add_u32 v46, v47, 2, v46")
    A("v_lshrrev_b32 v47, 4, v45")
    A("v_lshl_add_u32 v46, v47, 1, v46")
    A("v_and_b32 v47, 1, v45")
    A("v_add_u32 v46, v46, v47")
    A("v_lshlrev_b32 v45, 2, v46")
    A(f"ds_write_b32 v45, v12 offset:{L_H}")
    A("s_mov_b32 s8, s48"); A("s_mov_b32 s9, s49"); A(f"s_mov_b32 s10, {1376*1024}"); A("s_mov_b32 s11, 0x20000")
    A("s_lshl_b32 s31, s35, 15")
    A(f"v_mov_b32 v47, {L_H}")
    for q in range(8): A(f"v_mov_b32 v{hAU+q}, 0")
    A("s_mov_b32 s32, 4")
    A("s_waitcnt lgkmcnt(0)")
    A.lab("L_f2")
    for i in range(8):
        A(f"s_add_u32 s33, s31, {i*1024}")
        if ffn_s2: A(f"buffer_load_dwordx4 v[{64+4*i}:{64+4*i+3}], v35, s[8:11], s33 offen {ffn_nt}")
    A("ds_read_b128 v[128:131], v47")
    A("ds_read_b128 v[132:135], v47 offset:16")
    A("v_add_u32 v47, 32, v47")
    A(f"s_add_u32 s31, s31, {8*1024}")
    A("s_waitcnt vmcnt(0) lgkmcnt(0)")
    for i in range(8 if ffn_comp else 0):
        for q in range(4):
            r = 64 + 4 * i + q
            A(f"v_lshlrev_b32 v44, 16, v{r}")
            A(f"v_and_b32 v45, 0xffff0000, v{r}")
            A(f"v_fmac_f32 v{hAU+2*q}, v44, v{128+i}")
            A(f"v_fmac_f32 v{hAU+2*q+1}, v45, v{128+i}")
    A("s_sub_u32 s32, s32, 1")
    A("s_cmp_lg_u32 s32, 0")
    A("s_cbranch_scc1 L_f2")
    A("v_lshlrev_b32 v44, 5, v0")
    A(f"ds_write_b128 v44, v[{hAU}:{hAU+3}] offset:{L_FT}")
    A(f"ds_write_b128 v44, v[{hAU+4}:{hAU+7}] offset:{L_FT+16}")
    A("v_lshlrev_b32 v44, 3, v0")
    A("s_waitcnt lgkmcnt(0)")
    for q in range(4):
        A(f"ds_read_b64 v[{64+4*q}:{64+4*q+1}], v44 offset:{L_FT + 512*q}")
        A(f"v_mov_b32 v{64+4*q+2}, v{hT}"); A(f"v_mov_b32 v{64+4*q+3}, v{hT+1}")
    A("s_lshl_b32 s29, s35, 12")
    A(f"s_add_u32 s29, s29, {WS_FP}")
    A("s_waitcnt lgkmcnt(0)")
    for q in range(4 if fppub else 0):
        A(f"buffer_store_dwordx4 v[{64+4*q}:{64+4*q+3}], v35, s[12:15], s29 offen offset:{1024*q} sc1")
    A.lab("L_noffn")

    def emit_fp():
        A("s_and_b32 s29, s21, 7")
        A("s_cmp_lg_u32 s29, s22")
        A("s_cbranch_scc1 L_nocons1")
        hGG = 56
        A("v_lshrrev_b32 v45, 3, v0")
        A("v_lshlrev_b32 v45, 12, v45")
        A("v_and_b32 v46, 7, v0")
        A("v_lshl_add_u32 v45, v46, 4, v45")
        A("s_lshl_b32 s29, s21, 7")
        A(f"s_add_u32 s29, s29, {WS_FP}")
        A(f"v_mov_b32 v47, {hex(OOBV)}")
        A("v_cmp_gt_u32 vcc, 24, v0")
        A("s_nop 1")
        A("v_cndmask_b32 v47, v47, v45, vcc")
        A("s_mov_b32 s52, 0xff000000"); A("s_mov_b32 s53, -1")
        def floads():
            for k in range(6):
                A(f"s_add_u32 s33, s29, {k*8*4096}")
                va = 47 if k == 5 else 45
                A(f"buffer_load_dwordx4 v[{64+4*k}:{64+4*k+3}], v{va}, s[12:15], s33 offen sc1")
        if ffn and not gexp:
            poll("L_pf", floads, [64 + 4 * k + 2 for k in range(6)], extra_ok={5: "s[52:53]"}, sleep=gsleep)
        A("v_add_f32 v56, v64, v68"); A("v_add_f32 v57, v65, v69")
        for k in range(2, 6):
            A(f"v_add_f32 v56, v56, v{64+4*k}"); A(f"v_add_f32 v57, v57, v{64+4*k+1}")
        allreduce(A, "v_add_f32", 56, 44, rors=(8,))
        allreduce(A, "v_add_f32", 57, 44, rors=(8,))
        for r in (56, 57):
            rne_hi(A, r, r)
            silu(A, r, r, 44)
            rne_hi(A, r, r)
        A("s_mov_b32 s8, s4"); A("s_mov_b32 s9, s5"); A("s_mov_b32 s10, 1024"); A("s_mov_b32 s11, 0x20000")
        A("s_lshl_b32 s29, s21, 5")
        A("v_lshlrev_b32 v46, 2, v46")
        A("buffer_load_dword v58, v46, s[8:11], s29 offen")
        A("s_waitcnt vmcnt(0)")
        A("v_and_b32 v59, 0xffff0000, v58")
        A("v_lshlrev_b32 v58, 16, v58")
        A.lab("L_nocons1")
    if early_fp: emit_fp()
    A("s_lshl_b32 s29, s21, 7")
    A(f"s_add_u32 s29, s29, {WS_TICK}")
    A("v_mov_b32 v44, s29")
    A(f"v_mov_b32 v45, {hex(OOBV)}")
    A("v_cmp_eq_u32 vcc, 0, v0")
    A(f"v_mov_b32 v46, {L_PROG}")
    A(f"v_mov_b32 v47, {L_TK}")
    A("v_cndmask_b32 v44, v45, v44, vcc")
    A(f"s_mov_b32 s36, {NS - LEAD}")
    A("s_mov_b32 s37, 0")
    A.lab("L_tk")
    A(f"s_mov_b32 s34, {POLL_LIMIT}")
    A.lab("L_tkw")
    A("ds_read_b128 v[64:67], v46")
    A("s_waitcnt lgkmcnt(0)")
    A("v_max3_u32 v64, v64, v65, v66")
    A("v_max_u32 v64, v64, v67")
    A("s_nop 0")
    A("v_readfirstlane_b32 s29, v64")
    A("s_cmp_ge_u32 s29, s36")
    A("s_cbranch_scc1 L_tkgo")
    A(f"s_sleep {psleep}")
    A("s_sub_u32 s34, s34, 1")
    A("s_cmp_lg_u32 s34, 0")
    A("s_cbranch_scc1 L_tkw")
    A.lab("L_tkgo")
    A("v_mov_b32 v65, 4")
    A("buffer_atomic_add v65, v44, s[12:15], 0 offen sc0 sc1")
    A("s_waitcnt vmcnt(0)")
    A("v_readfirstlane_b32 s29, v65")
    A("s_cmp_lt_u32 s37, 180")
    A(f"s_cselect_b32 s29, s29, {NI - 32*NS}")
    A("v_mov_b32 v65, s29")
    A("ds_write_b32 v47, v65")
    A("v_add_u32 v47, 4, v47")
    A("s_add_u32 s36, s36, 1")
    A("s_add_u32 s37, s37, 1")
    A(f"s_cmp_lt_u32 s29, {NI - 32*NS}")
    A("s_cbranch_scc1 L_tk")

    if not early_fp: emit_fp()

    def engine(label, nitems, nslots, slot0, vaddr, sbase, shift, check, on_valid, smiss_init):
        sM, sC, sT, sO, sN = 60, 61, 62, 63, 34
        sI = 86
        A(f"s_mov_b32 s{sM}, {smiss_init}")
        A(f"s_mov_b32 s{sC}, 0")
        A(f"s_mov_b32 s{sN}, {POLL_LIMIT}")
        def issue(k):
            A(f"s_lshl_b32 s{sT}, -1, s{sC}")
            A(f"s_and_b32 s{sT}, s{sT}, s{sM}")
            A(f"s_cselect_b32 s{sT}, s{sT}, s{sM}")
            A(f"s_ff1_i32_b32 s{sI+k}, s{sT}")
            A(f"s_add_u32 s{sC}, s{sI+k}, 1")
            A(f"s_lshl_b32 s{sO}, s{sI+k}, {shift}")
            A(f"s_add_u32 s{sO}, s{sO}, {sbase}")
            r = slot0 + 4 * k
            A(f"buffer_load_dwordx4 v[{r}:{r+3}], {vaddr}, s[12:15], s{sO} offen sc1")
        for k in range(nslots): issue(k)
        A.lab(label)
        for k in range(nslots):
            r = slot0 + 4 * k
            A(f"s_waitcnt vmcnt({nslots-1})")
            check(r)
            A(f"s_lshl_b32 s{sT}, 1, s{sI+k}")
            A("s_cmp_eq_u64 vcc, -1")
            A(f"s_cselect_b32 s{sT}, s{sT}, 0")
            A(f"s_and_b32 s{sT}, s{sT}, s{sM}")
            A(f"s_cbranch_scc0 {label}_s{k}")
            A(f"s_xor_b32 s{sM}, s{sM}, s{sT}")
            on_valid(r)
            A(f"s_cmp_eq_u32 s{sM}, 0")
            A(f"s_cbranch_scc1 {label}_ok")
            A.lab(f"{label}_s{k}")
            issue(k)
        A(f"s_sub_u32 s{sN}, s{sN}, 1")
        A(f"s_cmp_lg_u32 s{sN}, 0")
        A(f"s_cbranch_scc1 {label}")
        A.lab(label + "_ok")
    A("v_mov_b32 v44, 0")
    A("v_lshlrev_b32 v45, 3, v0")
    A("v_cmp_eq_u32 s[52:53], 1, v33")
    A("v_cmp_eq_u32 s[54:55], 2, v33")
    A("v_cmp_eq_u32 s[56:57], 3, v33")
    A("v_lshlrev_b32 v46, 4, v33")
    A("v_lshlrev_b32 v47, 2, v0")
    A(f"s_mov_b32 s30, {hex(f2u(CSC))}")
    A(f"s_mov_b32 s31, {hex(f2u(-CSC))}")
    A("s_lshl_b32 s29, s2, 10")
    A(f"s_add_u32 s29, s29, {WS_P1}")
    A("s_lshl_b32 s32, s21, 13")
    A(f"s_add_u32 s32, s32, {WS_P1}")
    A("s_lshl_b32 s35, 1, s22")
    A("s_xor_b32 s35, s35, 0xff")
    A("s_waitcnt vmcnt(0)")
    A("s_barrier")
    if prio: A("s_setprio 3")
    ST(4)
    for w in range(4):
        A(f"ds_read_b32 v{80+w}, v44 offset:{L_ML+32*w+16}")
    for w in range(4):
        A(f"ds_read_b128 v[{64+4*w}:{64+4*w+3}], v44 offset:{L_ML+32*w}")
    for w in range(4):
        A(f"ds_read_b64 v[{84+2*w}:{84+2*w+1}], v45 offset:{L_PART+512*w}")
    A("s_waitcnt lgkmcnt(8)")
    A("v_max3_f32 v92, v80, v81, v82")
    A("v_max_f32 v92, v92, v83")
    A("v_mul_f32 v93, s31, v92")
    for w in range(4):
        A(f"v_fma_f32 v{80+w}, v{80+w}, s30, v93")
    for w in range(4):
        A(f"v_exp_f32 v{80+w}, v{80+w}")
    A("s_waitcnt lgkmcnt(4)")
    for w in range(4):
        A(f"v_add_f32 v{64+4*w}, v{64+4*w}, v{64+4*w+1}")
        A(f"v_add_f32 v{64+4*w+2}, v{64+4*w+2}, v{64+4*w+3}")
    for w in range(4):
        A(f"v_add_f32 v{64+4*w}, v{64+4*w}, v{64+4*w+2}")
    A("v_mul_f32 v94, v64, v80")
    for w in range(1, 4):
        A(f"v_fmac_f32 v94, v{64+4*w}, v{80+w}")
    A("s_waitcnt lgkmcnt(0)")
    A("v_rcp_f32 v95, v94")
    A("v_log_f32 v96, v94")
    A("v_mul_f32 v98, v84, v80")
    A("v_mul_f32 v99, v85, v80")
    for w in range(1, 4):
        A(f"v_fmac_f32 v98, v{84+2*w}, v{80+w}")
        A(f"v_fmac_f32 v99, v{85+2*w}, v{80+w}")
    A("v_sub_f32 v96, v96, v93")
    A("v_mul_f32 v98, v98, v95")
    A("v_mul_f32 v99, v99, v95")
    A(f"v_mov_b32 v51, v{hT}")
    A("v_mov_b32 v50, v96")
    A("v_mov_b32 v48, v98"); A("v_mov_b32 v49, v99")
    A("buffer_store_dwordx4 v[48:51], v35, s[12:15], s29 offen sc1")
    A("v_mov_b32 v97, 1.0")
    def chk1(r): A(f"v_cmp_eq_u32 vcc, v{r+3}, v{hT}")
    def val1(r):
        A(f"v_max_f32 v100, v96, v{r+2}")
        A(f"v_sub_f32 v101, v96, v100")
        A(f"v_sub_f32 v102, v{r+2}, v100")
        A("v_exp_f32 v101, v101")
        A("v_exp_f32 v102, v102")
        A("v_mov_b32 v96, v100")
        A("v_mul_f32 v98, v98, v101")
        A("v_mul_f32 v99, v99, v101")
        A("v_fma_f32 v97, v97, v101, v102")
        A(f"v_fmac_f32 v98, v{r}, v102")
        A(f"v_fmac_f32 v99, v{r+1}, v102")
    engine("L_e1", 8, E1, 64, "v35", "s32", 10, chk1, val1, "s35")
    ST(5)
    A("v_rcp_f32 v97, v97")
    A("s_nop 0")
    A("v_mul_f32 v98, v98, v97")
    A("v_mul_f32 v99, v99, v97")
    A("v_cvt_pk_bf16_f32 v98, v98, v99")
    A(f"ds_write_b32 v47, v98 offset:{L_O}")
    A("s_lshl_b32 s29, s21, 12")
    A("s_lshl_b32 s30, s22, 9")
    A("s_add_u32 s29, s29, s30")
    A(f"s_add_u32 s29, s29, {WS_P2}")
    A("v_lshlrev_b32 v45, 3, v0")
    A("s_waitcnt lgkmcnt(0)")
    hA2, hD2 = 104, 128
    for sx in range(4):
        A(f"ds_read_b128 v[{hA2+4*sx}:{hA2+4*sx+3}], v46 offset:{L_O + 64*sx}")
    for sx in range(4):
        A(f"s_waitcnt lgkmcnt({3-sx})")
        for cg in range(4):
            c = "0" if sx == 0 else f"v[{hD2+4*cg}:{hD2+4*cg+3}]"
            A(f"v_mfma_f32_16x16x32_bf16 v[{hD2+4*cg}:{hD2+4*cg+3}], v[{hA2+4*sx}:{hA2+4*sx+3}], v[{hWO+16*cg+4*sx}:{hWO+16*cg+4*sx+3}], {c}")
    A(f"v_mov_b32 v50, v{hT}"); A(f"v_mov_b32 v51, v{hT+1}")
    A("s_nop 5")
    A(f"v_cndmask_b32 v48, v{hD2}, v{hD2+4}, s[52:53]")
    A(f"v_cndmask_b32 v48, v48, v{hD2+8}, s[54:55]")
    A(f"v_cndmask_b32 v48, v48, v{hD2+12}, s[56:57]")
    A("s_nop 1")
    A("v_mov_b32_dpp v49, v48 quad_perm:[1,0,3,2] row_mask:0xf bank_mask:0xf")
    A("s_mov_b32 exec_lo, 0x55555555")
    A("s_mov_b32 exec_hi, 0x55555555")
    A("buffer_store_dwordx4 v[48:51], v45, s[12:15], s29 offen sc1")
    A("s_mov_b64 exec, -1")
    ST(6)
    A("s_and_b32 s29, s21, 7")
    A("s_cmp_lg_u32 s29, s22")
    A("s_cbranch_scc1 L_hend")
    A("v_lshrrev_b32 v45, 3, v0")
    A("v_lshlrev_b32 v45, 12, v45")
    A("v_and_b32 v46, 7, v0")
    A("v_lshl_add_u32 v45, v46, 4, v45")
    A("s_lshl_b32 s32, s21, 7")
    A(f"s_add_u32 s32, s32, {WS_P2}")
    A("v_mov_b32 v52, 0"); A("v_mov_b32 v53, 0")
    def chk2(r): A(f"v_cmp_eq_u64 vcc, v[{r+2}:{r+3}], v[{hT}:{hT+1}]")
    def val2(r):
        A(f"v_add_f32 v52, v52, v{r}")
        A(f"v_add_f32 v53, v53, v{r+1}")
    engine("L_e2", 4, E2, 224, "v45", "s32", 15, chk2, val2, "15")
    A("v_mov_b32 v48, v52"); A("v_mov_b32 v49, v53")
    allreduce(A, "v_add_f32", 48, 44, rors=(8,))
    allreduce(A, "v_add_f32", 49, 44, rors=(8,))
    for (r, g, x) in ((48, 56, 58), (49, 57, 59)):
        rne_hi(A, r, r)
        A(f"v_mul_f32 v{r}, v{r}, v{g}")
        rne_hi(A, r, r)
        A(f"v_add_f32 v{r}, v{r}, v{x}")
    A("v_cvt_pk_bf16_f32 v48, v48, v49")
    A("s_mov_b32 s8, s50"); A("s_mov_b32 s9, s51"); A("s_mov_b32 s10, 1024"); A("s_mov_b32 s11, 0x20000")
    A("s_lshl_b32 s29, s21, 5")
    A("v_lshlrev_b32 v46, 2, v46")
    A("s_mov_b64 exec, 0xff")
    A("buffer_store_dword v48, v46, s[8:11], s29 offen")
    A("s_cmp_lg_u32 s21, 0")
    A("s_cbranch_scc1 L_hend")
    A("s_mov_b64 exec, 1")
    A(f"buffer_store_dwordx2 v[{hT}:{hT+1}], v36, s[12:15], 0 offen sc1")
    A.lab("L_hend")
    A("s_mov_b64 exec, -1")
    A("s_waitcnt vmcnt(0)")
    if stamp:
        stamp_out(A, 1)
    A.lab("L_end")
    A("s_endpgm")

    head = HDR + f"; @launch grid=(256,1,1) block=({NW*64},1,1) lds={LDS_BYTES}\n" + f""".amdgcn_target "amdgcn-amd-amdhsa--gfx950"
.text
.globl {NAME}_kernel
.p2align 8
.type {NAME}_kernel,@function
{NAME}_kernel:
"""
    foot = f""".section .rodata,"a"
.p2align 6
.amdhsa_kernel {NAME}_kernel
  .amdhsa_next_free_vgpr 256
  .amdhsa_next_free_sgpr 102
  .amdhsa_accum_offset 256
  .amdhsa_group_segment_fixed_size 0
  .amdhsa_kernarg_size 96
  .amdhsa_user_sgpr_count 2
  .amdhsa_user_sgpr_kernarg_segment_ptr 1
  .amdhsa_system_sgpr_workgroup_id_x 1
.end_amdhsa_kernel
"""
    return head + A.text() + foot

def stamp_out(A, helper):
    A("s_memrealtime s[84:85]")
    A("s_waitcnt lgkmcnt(0)")
    A("s_mul_i32 s29, s2, 5")
    A("s_add_u32 s29, s29, s20")
    A("s_lshl_b32 s29, s29, 5")
    A(f"s_add_u32 s29, s29, {WS_DBG}")
    for i in range(8):
        A(f"v_mov_b32 v{8+i}, s{70+2*i}")
    A("v_mov_b32 v16, s29")
    A("s_mov_b64 exec, 1")
    A("global_store_dwordx4 v16, v[8:11], s[24:25]")
    A("global_store_dwordx4 v16, v[12:15], s[24:25] offset:16")
    A("s_waitcnt vmcnt(0)")

if __name__ == "__main__":
    kw = eval("dict(" + (sys.argv[2] if len(sys.argv) > 2 else "") + ")")
    open(sys.argv[1], "w").write(gen(**kw))
```

```python
import sys, math, struct

NAME = "recurrent_scan__mha_block_cached__swiglu_ffn__decode"

HDR = """; Kernarg layout for this problem (96 bytes, ptrs only, base s[0:1]):
"""

def f2u(x):
    return struct.unpack("<I", struct.pack("<f", x))[0]

WS_EPOCH = 0x0
WS_TICK  = 0x1000
WS_QP    = 0x10000
WS_P1    = 0x80000
WS_P2    = 0x100000
WS_P2F  = 0x120000
WS_FP    = 0x140000
WS_DBG   = 0x180000
WS_S1    = 0x1A0000
WS_SIZE  = 0x200000

L_XN = 0
L_Q  = 2048
L_PART = 2304
L_ML = 4352
L_H  = 4480
L_O  = 4608
L_TK = 5120
L_PROG = 5888
L_FLAG = 6140
L_FT = 6144
L_W = 8192
W_RS = 144
LDS_BYTES = 8192 + 128 * 144

DEAD = 0x10000000
OOBV = 0x7FFFFFF0

SCALE = 128 ** -0.5
LOG2E = 1.4426950408889634
CSC = SCALE * LOG2E

class Em:
    def __init__(self):
        self.L = []
        self.vm = []
    def __call__(self, s):
        self.L.append(s)
    def lab(self, s):
        self.L.append(s + ":")
    def c(self, s):
        self.L.append("; " + s)
    def vmem(self, s, tag):
        self.L.append(s); self.vm.append(tag)
    def wait_tag(self, tag):
        idx = max(i for i, t in enumerate(self.vm) if t == tag)
        n = len(self.vm) - 1 - idx
        assert n <= 63, n
        self.L.append(f"s_waitcnt vmcnt({n})")
        return n
    def text(self):
        out = []
        for x in self.L:
            if x.endswith(":") or x.startswith(";"):
                out.append(x)
            else:
                out.append("    " + x)
        return "\n".join(out) + "\n"

def allreduce(A, op, v, t, rors=(8, 4, 2, 1), x16=True, x32=True):
    for r in rors:
        A("s_nop 1")
        A(f"{op}_dpp v{v}, v{v}, v{v} row_ror:{r} row_mask:0xf bank_mask:0xf")
    if x16:
        A(f"v_mov_b32 v{t}, v{v}")
        A("s_nop 1")
        A(f"v_permlane16_swap_b32 v{v}, v{t}")
        A(f"{op} v{v}, v{v}, v{t}")
    if x32:
        A(f"v_mov_b32 v{t}, v{v}")
        A("s_nop 1")
        A(f"v_permlane32_swap_b32 v{v}, v{t}")
        A(f"{op} v{v}, v{v}, v{t}")

def rne_hi(A, dst, src):
    A(f"v_cvt_pk_bf16_f32 v{dst}, v{src}, v{src}")
    A(f"v_and_b32 v{dst}, 0xffff0000, v{dst}")

def silu(A, dst, src, t):
    A(f"v_mul_f32 v{t}, {hex(f2u(-LOG2E))}, v{src}")
    A(f"v_exp_f32 v{t}, v{t}")
    A("s_nop 0")
    A(f"v_add_f32 v{t}, 1.0, v{t}")
    A(f"v_rcp_f32 v{t}, v{t}")
    A("s_nop 0")
    A(f"v_mul_f32 v{dst}, v{src}, v{t}")

def gen(R=6, F=2, NS=58, HELPER=0, POLL_LIMIT=400000, dbg=False, nt_w="nt", stamp=False, prio=True,
        ffn=1, ffn_nt="nt", ffn_comp=True, ffn_s1=True, ffn_s2=True, gsleep=8, gexp=False,
        LEAD=2, wq_on=True, wo_on=True, psleep=2, cheapq=False, E1=4, E2=4, kpol="nt", vpol="nt", s1sleep=8, early_fp=False, s1pub=True, s1poll=True, fppub=True, s1comp=True, s2on=True, s2lvl=0, qsleep0=0, qsleep=0, lay='head', rot=0, tlbpf=0, tlbpos=1, S=1024, wperm=0, bits=None, xors=(), xmap=None, bar0=True, hprio0=3, sprio=1, qflag=False, prost=False, D=1, NT=None, progA=False, p2fast=0, p2per=8, outpol='', eep=False, p1q=False):
    A = Em()
    NW = 5
    WSTREAM = 32
    NI = 2048
    assert F == 2
    assert bar0 or not qflag
    A("s_cmp_ge_u32 s2, 256")
    A("s_cbranch_scc1 L_end")
    if xmap is not None:
        assert sorted(xmap) == list(range(8))
        A("s_mov_b32 s3, 0")
        p = 0
        while p < 8:
            k = p
            while k + 1 < 8 and xmap[k + 1] == xmap[k] + 1: k += 1
            A(f"s_bfe_u32 s20, s2, {hex(((k - p + 1) << 16) | p)}")
            A(f"s_lshl_b32 s20, s20, {xmap[p]}")
            A("s_or_b32 s3, s3, s20")
            p = k + 1
        A("s_mov_b32 s2, s3")
    A("v_lshrrev_b32 v1, 6, v0")
    A("v_and_b32 v0, 63, v0")
    A("s_load_dwordx2 s[24:25], s[0:1], 88")
    A("v_readfirstlane_b32 s20, v1")
    A("s_lshr_b32 s21, s2, 3")
    A("s_and_b32 s22, s2, 7")
    def ST(i):
        if stamp: A(f"s_memrealtime s[{70+2*i}:{71+2*i}]")
    if stamp:
        for i in range(8): A(f"s_mov_b32 s{70+2*i}, 0")
    ST(0)
    A(f"s_cmp_eq_u32 s20, {HELPER}")
    A("s_cbranch_scc1 L_helper")

    A("s_load_dwordx4 s[4:7], s[0:1], 8")
    if prio: A(f"s_setprio {sprio}")
    if HELPER == 0:
        A("s_sub_u32 s23, s20, 1")
    else:
        A("s_mov_b32 s23, s20")
    vL = 0
    vKA, vVA, vCTR, vTICK = 2, 3, 4, 5
    vM = 6
    vO = 12
    vS = 16
    vm, vl = 10, 11
    vT, vU, vNM, vAL = 20, 21, 22, 23
    vP = 24
    vA = 28
    vQ = 44
    vRING = 64
    def kreg(k, u): return vRING + k * 32 + u * 4
    def vreg(k, u): return vRING + k * 32 + 16 + u * 4
    assert vRING + R * 32 <= 256
    sOFF = 40
    A("v_and_b32 v20, 15, v0")
    A("v_lshrrev_b32 v21, 4, v0")
    if bits is None:
        lgS = S.bit_length() - 1
        assert S == 1 << lgS and lgS >= 10
        rest = [b for b in range(10, 23) if b not in (lgS, lgS + 1)]
        bits_ = [8, 9, lgS, lgS + 1] + rest
        if wperm == 1:
            r = rest
            bits_ = [8, 9, lgS, lgS + 1] + [r[3], r[4]] + r[0:3] + r[5:]
    else:
        bits_ = list(bits)
    assert sorted(bits_) == list(range(8, 23)), bits_
    bg, bu, bw, bt = bits_[0:2], bits_[2:4], bits_[4:6], bits_[6:]
    def dep2(val, pos): return ((val & 1) << pos[0]) | ((val >> 1) << pos[1])
    def vdep2(dst, src, pos, tmp):
        A(f"v_and_b32 v{dst}, 1, v{src}")
        A(f"v_lshlrev_b32 v{dst}, {pos[0]}, v{dst}")
        A(f"v_lshrrev_b32 v{tmp}, 1, v{src}")
        A(f"v_lshl_add_u32 v{dst}, v{tmp}, {pos[1]}, v{dst}")
    A("v_and_b32 v22, 3, v20")
    vdep2(23, 22, bu, 24)
    A("v_lshrrev_b32 v22, 2, v20")
    vdep2(25, 22, bg, 24)
    A("v_add_u32 v23, v23, v25")
    A(f"v_lshl_add_u32 v{vKA}, v21, 4, v23")
    vdep2(23, 21, bg, 24)
    A(f"v_lshl_add_u32 v{vVA}, v20, 4, v23")
    vVAu = [vVA, 61, 62, 63]
    bigS = dep2(3, bu) >= 4096
    if bigS:
        for u in range(1, 4):
            A(f"v_add_u32 v{vVAu[u]}, {dep2(u, bu)}, v{vVA}")
    def vaddr(u):
        return (f"v{vVAu[u]}", 0) if bigS else (f"v{vVA}", dep2(u, bu))
    runs = []
    i = 0
    while i < 9:
        k = i
        while k + 1 < 9 and bt[k + 1] == bt[k] + 1: k += 1
        runs.append((i + 2, k - i + 1, bt[i])); i = k + 1
    def item_addr(dst, src, tmp):
        d = dst if (len(runs) == 1 or dst != src) else "s38"
        for ri, (lo, ln, pos) in enumerate(runs):
            t = d if ri == 0 else tmp
            A(f"s_bfe_u32 {t}, {src}, {hex((ln << 16) | lo)}")
            A(f"s_lshl_b32 {t}, {t}, {pos}")
            if ri: A(f"s_add_u32 {d}, {d}, {tmp}")
        if d != dst: A(f"s_mov_b32 {dst}, {d}")
        groups = {}
        for (sb, db) in xors:
            assert sb in bt and db not in bg + bu and sb != db
            groups[sb - db] = groups.get(sb - db, 0) | (1 << db)
        assert not (set(x[0] for x in xors) & set(x[1] for x in xors))
        for sh, m in groups.items():
            if sh > 0: A(f"s_lshr_b32 {tmp}, {dst}, {sh}")
            else: A(f"s_lshl_b32 {tmp}, {dst}, {-sh}")
            A(f"s_and_b32 {tmp}, {tmp}, {hex(m)}")
            A(f"s_xor_b32 {dst}, {dst}, {tmp}")
    A("v_and_b32 v22, 1, v20")
    A("v_mov_b32 v23, 0xffff")
    A("v_mov_b32 v24, 0xffff0000")
    A("v_cmp_eq_u32 vcc, 1, v22")
    A("v_lshrrev_b32 v25, 1, v20")
    A("s_nop 0")
    A("v_cndmask_b32 v23, v23, v24, vcc")
    for d in range(4):
        A(f"v_cmp_eq_u32 vcc, {d}, v25")
        A("s_nop 1")
        A(f"v_cndmask_b32 v{vM+d}, 0, v23, vcc")
    A(f"v_mov_b32 v{vm}, 0xff800000")
    A(f"v_mov_b32 v{vl}, 0")
    for i in range(4): A(f"v_mov_b32 v{vO+i}, 0")
    A(f"s_mov_b32 s30, {hex(f2u(CSC))}")
    A(f"s_mov_b32 s31, {hex(f2u(-CSC))}")
    A("s_lshl_b32 s26, s21, 23")
    A("s_and_b32 s29, s23, 1"); A(f"s_lshl_b32 s29, s29, {bw[0]}"); A("s_add_u32 s26, s26, s29")
    A("s_lshr_b32 s29, s23, 1"); A(f"s_lshl_b32 s29, s29, {bw[1]}"); A("s_add_u32 s26, s26, s29")
    RS = 32 if lay == "head" else 4
    if lay == "head":
        A("s_lshl_b32 s27, s22, 2")
    else:
        A(f"s_mul_i32 s27, s22, {4*NS}")
    A("s_add_u32 s27, s27, s23")
    if rot:
        A(f"s_mul_i32 s36, s21, {rot}")
    A("s_waitcnt lgkmcnt(0)")
    A("s_mov_b32 s8, s4"); A("s_mov_b32 s9, s5"); A(f"s_mov_b32 s10, {hex(DEAD)}"); A("s_mov_b32 s11, 0x20000")
    A("s_mov_b32 s12, s6"); A("s_mov_b32 s13, s7"); A(f"s_mov_b32 s14, {hex(DEAD)}"); A("s_mov_b32 s15, 0x20000")
    if dbg:
        A("s_mov_b32 s16, s24"); A("s_mov_b32 s17, s25"); A("s_mov_b32 s18, 0"); A("s_mov_b32 s19, 0x20000")
    if bar0: A("s_barrier")

    def static_off(n):
        k = n % R
        A(f"s_add_u32 s29, s27, {RS*n}")
        if rot:
            A("s_add_u32 s29, s29, s36")
            A("s_and_b32 s29, s29, 2047")
        item_addr("s29", "s29", "s33")
        A(f"s_xor_b32 s{sOFF+k}, s29, s26")
    def issueK(n):
        k = n % R
        for u in range(4):
            r = kreg(k, u)
            A.vmem(f"buffer_load_dwordx4 v[{r}:{r+3}], v{vKA}, s[8:11], s{sOFF+k} offen offset:{u*64} {kpol}", ("K", n))
    def issueV(n):
        k = n % R
        for u in range(4):
            r = vreg(k, u)
            va, of = vaddr(u)
            A.vmem(f"buffer_load_dwordx4 v[{r}:{r+3}], {va}, s[12:15], s{sOFF+k} offen offset:{of} {vpol}", ("V", n))
    def qk_mfma(n):
        k = n % R
        for u in range(4):
            r = kreg(k, u)
            c = "0" if u == 0 else f"v[{vS}:{vS+3}]"
            A(f"v_mfma_f32_16x16x32_bf16 v[{vS}:{vS+3}], v[{r}:{r+3}], v[{vQ+4*u}:{vQ+4*u+3}], {c}")
    def softmax(n, pad):
        if pad > 0: A(f"s_nop {pad-1}")
        A(f"v_max3_f32 v{vT}, v{vS}, v{vS+1}, v{vS+2}")
        A(f"v_max_f32 v{vT}, v{vT}, v{vS+3}")
        A(f"v_mov_b32 v{vU}, v{vT}")
        A("s_nop 1")
        A(f"v_permlane16_swap_b32 v{vT}, v{vU}")
        A(f"v_max_f32 v{vT}, v{vT}, v{vU}")
        A(f"v_mov_b32 v{vU}, v{vT}")
        A("s_nop 1")
        A(f"v_permlane32_swap_b32 v{vT}, v{vU}")
        A(f"v_max3_f32 v{vT}, v{vT}, v{vU}, v{vm}")
        A(f"v_mul_f32 v{vNM}, s31, v{vT}")
        A(f"v_fma_f32 v{vAL}, v{vm}, s30, v{vNM}")
        for i in range(4):
            A(f"v_fma_f32 v{vP+i}, v{vS+i}, s30, v{vNM}")
        A(f"v_exp_f32 v{vAL}, v{vAL}")
        for i in range(4):
            A(f"v_exp_f32 v{vP+i}, v{vP+i}")
        A(f"v_mov_b32 v{vm}, v{vT}")
        for i in range(4):
            A(f"v_mul_f32 v{vO+i}, v{vO+i}, v{vAL}")
        A(f"v_add_f32 v{vT}, v{vP}, v{vP+1}")
        A(f"v_add_f32 v{vU}, v{vP+2}, v{vP+3}")
        for i in range(4):
            A(f"v_cvt_pk_bf16_f32 v{vP+i}, v{vP+i}, v{vP+i}")
        A(f"v_add_f32 v{vT}, v{vT}, v{vU}")
        A(f"v_fma_f32 v{vl}, v{vl}, v{vAL}, v{vT}")
        for i in range(4):
            for d in range(4):
                A(f"v_and_b32 v{vA+4*i+d}, v{vP+i}, v{vM+d}")
    def pv_mfma(n):
        k = n % R
        for u in range(4):
            r = vreg(k, u)
            A(f"v_mfma_f32_16x16x32_bf16 v[{vO}:{vO+3}], v[{vA+4*u}:{vA+4*u+3}], v[{r}:{r+3}], v[{vO}:{vO+3}]")

    units = []
    def issue_unit(u):
        n = u // 2
        if u % 2 == 0:
            static_off(n); issueK(n)
        else:
            issueV(n)
    def land_unit(u):
        A.wait_tag(("K" if u % 2 == 0 else "V", u // 2))
    for u in range(F): issue_unit(u)
    if prost: ST(1)
    for u in range(2 * R - F):
        land_unit(u)
        if prost and u in (0, 1, 4): ST({0: 2, 1: 3, 4: 5}[u])
        issue_unit(u + F)
    if prost: ST(6)
    _ST = ST
    if prost: ST = lambda i: (_ST(i) if i == 4 else None)
    ST(1)
    if qflag:
        A("v_mov_b32 v20, 0")
        A(f"s_mov_b32 s34, {POLL_LIMIT}")
        A.lab("L_qw")
        A(f"ds_read_b32 v21, v20 offset:{L_FLAG}")
        A("s_waitcnt lgkmcnt(0)")
        A("v_readfirstlane_b32 s29, v21")
        A("s_cmp_eq_u32 s29, 1")
        A("s_cbranch_scc1 L_qw_ok")
        A("s_sleep 1")
        A("s_sub_u32 s34, s34, 1")
        A("s_cmp_lg_u32 s34, 0")
        A("s_cbranch_scc1 L_qw")
        A.lab("L_qw_ok")
    else:
        A("s_barrier")
    ST(2)
    A("v_lshrrev_b32 v20, 4, v0")
    A("v_lshlrev_b32 v20, 4, v20")
    for s in range(4):
        A(f"ds_read_b128 v[{vQ+4*s}:{vQ+4*s+3}], v20 offset:{L_Q + s*64}")
    A("s_waitcnt lgkmcnt(0)")
    P = 0; I = 2 * R; Ld = 2 * R - F
    def proc_unit(u):
        n = u // 2
        if u % 2 == 0:
            qk_mfma(n); softmax(n, 8)
        else:
            A("s_nop 1")
            pv_mfma(n)
    state_ok = lambda: (P == Ld and P % 2 == 0 and I == P + F)
    steps = 0
    while not state_ok():
        steps += 1
        assert steps < 100
        while P <= I - 2 * R:
            proc_unit(P); P += 1
        if I - Ld < F or True:
            land_unit(Ld); Ld += 1
            issue_unit(I); I += 1
        k = 0
        while P < Ld and k < 2:
            proc_unit(P); P += 1; k += 1
        if P == Ld and P % 2 == 1:
            land_unit(Ld); Ld += 1
            issue_unit(I); I += 1
            proc_unit(P); P += 1
    n0 = P // 2
    assert I == 2 * n0 + 2
    A.c(f"catch-up done: loop starts at item {n0}, slot {n0 % R}")
    ST(3)
    assert n0 + 2 <= NS
    POOL = NI - 32 * NS
    vTKD = 60
    if NT is None: NT = n0
    assert n0 <= NT and NT + D < NS and 1 <= D <= R - 1
    assert NT + 1 <= NS - LEAD, "ticket trigger would be missed"
    A(f"s_add_u32 s27, s27, {RS*(n0+1)}")
    A("s_lshl_b32 s29, s23, 2")
    A(f"s_add_u32 s29, s29, {L_PROG}")
    A("v_mov_b32 v1, s29")
    A(f"s_add_u32 s35, s23, {32*NS}")
    if dbg:
        A("s_mov_b32 s60, 0"); A("s_mov_b32 s61, 0")
    def static_next(k):
        if rot:
            A("s_add_u32 s33, s27, s36")
            A("s_and_b32 s33, s33, 2047")
            item_addr("s33", "s33", "s37")
        else:
            item_addr("s33", "s27", "s37")
        A(f"s_xor_b32 s{sOFF+k}, s33, s26")
        if dbg:
            A("s_add_u32 s60, s60, s27")
            A("s_add_u32 s61, s61, 1")
        A(f"s_add_u32 s27, s27, {RS}")
    def rawK(k):
        for u in range(4):
            r = kreg(k, u)
            A(f"buffer_load_dwordx4 v[{r}:{r+3}], v{vKA}, s[8:11], s{sOFF+k} offen offset:{u*64} {kpol}")
    def rawV(k):
        for u in range(4):
            r = vreg(k, u)
            va, of = vaddr(u)
            A(f"buffer_load_dwordx4 v[{r}:{r+3}], {va}, s[12:15], s{sOFF+k} offen offset:{of} {vpol}")
    cntA = NT - n0
    if cntA > 0:
        epos = (cntA - 1) % R
        passes = (cntA - 1) // R + 1
        A(f"s_mov_b32 s28, {passes}")
        if progA: A(f"v_mov_b32 v{vTICK}, {n0+1}")
        A.lab("L_loopA")
        for kk in range(R):
            n = n0 + kk
            k = n % R; k2 = (n + 1) % R
            A.c(f"--- A: item slot {k}")
            static_next(k2)
            A("s_waitcnt vmcnt(4)")
            rawK(k2)
            if progA: A(f"ds_write_b32 v1, v{vTICK}")
            qk_mfma(n)
            if progA: A(f"v_add_u32 v{vTICK}, 1, v{vTICK}")
            softmax(n, 7 if progA else 8)
            A("s_waitcnt vmcnt(4)")
            rawV(k2)
            pv_mfma(n)
            if kk == epos:
                A("s_sub_u32 s28, s28, 1")
                A("s_cmp_eq_u32 s28, 0")
                A("s_cbranch_scc1 L_trans")
        A("s_branch L_loopA")
        A.lab("L_trans")
    for d in range(1, D):
        k = (NT + d) % R
        static_next(k)
        rawK(k); rawV(k)
    A(f"s_mov_b32 s28, {NT+D}")
    A(f"v_mov_b32 v{vCTR}, {L_TK - 4*(NS - (NT+1+D))}")
    A(f"v_mov_b32 v{vTICK}, {NT+1}")
    WB = 4 * (2 * D - 1)
    A.lab("L_loop")
    spins = []
    for kk in range(R):
        n = NT + kk
        k = n % R; k2 = (n + D) % R
        A.c(f"--- item slot {k}")
        A(f"s_cmp_ge_u32 s{sOFF+k}, {hex(DEAD)}")
        A("s_cbranch_scc1 L_fin")
        A(f"s_cmp_lt_u32 s28, {NS}")
        A(f"s_cbranch_scc1 L_stat{kk}")
        A("s_waitcnt lgkmcnt(0)")
        A(f"v_readfirstlane_b32 s29, v{vTKD}")
        A("s_cmp_eq_u32 s29, -1")
        A(f"s_cbranch_scc1 L_spin{kk}")
        A.lab(f"L_back{kk}")
        A("s_add_u32 s27, s29, s35")
        A.lab(f"L_stat{kk}")
        if rot:
            A("s_add_u32 s33, s27, s36")
            A("s_and_b32 s33, s33, 2047")
            item_addr("s33", "s33", "s37")
        else:
            item_addr("s33", "s27", "s37")
        A("s_xor_b32 s33, s33, s26")
        A(f"s_cmp_lt_u32 s27, {NI}")
        A(f"s_cselect_b32 s{sOFF+k2}, s33, {hex(DEAD)}")
        if dbg:
            A("s_cselect_b32 s62, s27, 0")
            A("s_cselect_b32 s63, 1, 0")
            A("s_add_u32 s60, s60, s62")
            A("s_add_u32 s61, s61, s63")
        A(f"s_add_u32 s27, s27, {RS}")
        A("s_add_u32 s28, s28, 1")
        A(f"s_waitcnt vmcnt({WB})")
        rawK(k2)
        A(f"ds_write_b32 v1, v{vTICK}")
        A(f"ds_read_b32 v{vTKD}, v{vCTR}")
        qk_mfma(n)
        A(f"v_add_u32 v{vTICK}, 1, v{vTICK}")
        A(f"v_add_u32 v{vCTR}, 4, v{vCTR}")
        softmax(n, 6)
        A(f"s_waitcnt vmcnt({WB})")
        rawV(k2)
        pv_mfma(n)
        spins.append(kk)
    A("s_branch L_loop")
    for kk in spins:
        A.lab(f"L_spin{kk}")
        A(f"s_mov_b32 s34, {POLL_LIMIT}")
        A(f"v_add_u32 v{vT}, -4, v{vCTR}")
        A.lab(f"L_spin{kk}_l")
        A(f"ds_read_b32 v{vTKD}, v{vT}")
        A("s_waitcnt lgkmcnt(0)")
        A(f"v_readfirstlane_b32 s29, v{vTKD}")
        A("s_cmp_lg_u32 s29, -1")
        A(f"s_cbranch_scc1 L_back{kk}")
        A("s_sleep 1")
        A("s_sub_u32 s34, s34, 1")
        A("s_cmp_lg_u32 s34, 0")
        A(f"s_cbranch_scc1 L_spin{kk}_l")
        A(f"s_mov_b32 s29, {POOL}")
        A(f"s_branch L_back{kk}")
    A.lab("L_fin")
    A("s_nop 7")
    A("v_lshrrev_b32 v20, 4, v0")
    A("v_and_b32 v21, 15, v0")
    A("s_lshl_b32 s29, s23, 5")
    A(f"s_add_u32 s29, s29, {L_ML}")
    A("v_lshlrev_b32 v22, 2, v20")
    A("v_add_u32 v22, s29, v22")
    A(f"ds_write_b32 v22, v{vl}")
    A("v_mov_b32 v22, s29")
    A(f"ds_write_b32 v22, v{vm} offset:16")
    A("s_lshl_b32 s29, s23, 9")
    A(f"s_add_u32 s29, s29, {L_PART}")
    A("v_lshlrev_b32 v22, 5, v21")
    A("v_lshl_add_u32 v22, v20, 4, v22")
    A("v_add_u32 v22, s29, v22")
    A("s_mov_b32 exec_hi, 0")
    A(f"ds_write_b128 v22, v[{vO}:{vO+3}]")
    A("s_mov_b32 exec_hi, -1")
    ST(4)
    A("s_waitcnt lgkmcnt(0)")
    A("s_barrier")
    ST(5)
    A("s_waitcnt vmcnt(0)")
    if dbg:
        A("s_lshl_b32 s29, s2, 2")
        A("s_add_u32 s29, s29, s23")
        A("s_lshl_b32 s29, s29, 3")
        A(f"s_add_u32 s29, s29, {WS_DBG + 0x10000}")
        A("v_mov_b32 v8, s60"); A("v_mov_b32 v9, s61"); A("v_mov_b32 v12, 0")
        A(f"s_mov_b32 s18, {hex(WS_SIZE)}")
        A("s_mov_b64 exec, 1")
        A("buffer_store_dwordx2 v[8:9], v12, s[16:19], s29 offen")
        A("s_waitcnt vmcnt(0)")
    if stamp:
        stamp_out(A, 0)
    A("s_endpgm")

    A.lab("L_helper")
    ST = _ST
    A.vm = []
    A("s_load_dwordx2 s[4:5], s[0:1], 0")
    A("s_load_dwordx4 s[36:39], s[0:1], 24")
    A("s_load_dwordx4 s[44:47], s[0:1], 48")
    A("s_load_dwordx4 s[48:51], s[0:1], 64")
    if tlbpf: A("s_load_dwordx4 s[40:43], s[0:1], 8")
    if prio: A(f"s_setprio {hprio0}")
    hE = 2
    hT = 4
    hX = 8
    hF = 12
    hW = 64
    hM = 20
    hD = 28
    A("v_and_b32 v32, 15, v0")
    A("v_lshrrev_b32 v33, 4, v0")
    A("s_lshl_b32 s29, s22, 19")
    A("s_lshl_b32 s30, s21, 8")
    A("s_add_u32 s29, s29, s30")
    A("v_lshlrev_b32 v34, 17, v33")
    A("v_lshl_add_u32 v34, v32, 4, v34")
    A("v_add_u32 v34, s29, v34")
    A("v_lshlrev_b32 v35, 4, v0")
    A("v_mov_b32 v36, 0")
    if qflag: A(f"ds_write_b32 v36, v36 offset:{L_FLAG}")
    A("s_waitcnt lgkmcnt(0)")
    A("s_mov_b32 s12, s24"); A("s_mov_b32 s13, s25"); A(f"s_mov_b32 s14, {hex(WS_SIZE)}"); A("s_mov_b32 s15, 0x20000")
    A("s_mov_b32 s8, s4"); A("s_mov_b32 s9, s5"); A("s_mov_b32 s10, 1024"); A("s_mov_b32 s11, 0x20000")
    A("s_mov_b32 s16, s36"); A("s_mov_b32 s17, s37"); A(f"s_mov_b32 s18, {512*8192}"); A("s_mov_b32 s19, 0x20000")
    A.vmem(f"buffer_load_dwordx4 v[{hX}:{hX+3}], v35, s[8:11], 0 offen", "x")
    A.vmem(f"buffer_load_dwordx2 v[{hE}:{hE+1}], v36, s[12:15], 0 offen sc1", "E")
    for i in range(16):
        A(f"s_mov_b32 s29, {i*8192}")
        if wq_on or i == 0: A.vmem(f"buffer_load_dwordx4 v[{hW+4*i}:{hW+4*i+3}], v34, s[16:19], s29 offen {nt_w}", "wq")
    if bar0: A("s_barrier")
    A("s_cmp_lg_u32 s22, 0")
    A("s_cbranch_scc1 L_nozero")
    A("s_lshl_b32 s29, s21, 7")
    A(f"s_add_u32 s29, s29, {WS_TICK}")
    A("s_mov_b64 exec, 1")
    A("buffer_store_dword v36, v36, s[12:15], s29 offen sc1")
    A("s_mov_b64 exec, -1")
    A.lab("L_nozero")
    A("v_lshlrev_b32 v37, 2, v0")
    A("v_mov_b32 v38, -1")
    for q in range(3):
        A(f"ds_write_b32 v37, v38 offset:{L_TK + 256*q}")
    A(f"ds_write_b32 v37, v36 offset:{L_PROG}")
    A("v_and_b32 v37, 1, v32")
    A("v_mov_b32 v38, 0xffff")
    A("v_mov_b32 v39, 0xffff0000")
    A("v_cmp_eq_u32 vcc, 1, v37")
    A("v_lshrrev_b32 v40, 1, v32")
    A("v_and_b32 v41, 3, v40")
    A("v_cndmask_b32 v38, v38, v39, vcc")
    for d in range(4):
        A(f"v_cmp_eq_u32 vcc, {d}, v40")
        A("s_nop 1")
        A(f"v_cndmask_b32 v{hM+d}, 0, v38, vcc")
        A(f"v_cmp_eq_u32 vcc, {d}, v41")
        A("s_nop 1")
        A(f"v_cndmask_b32 v{hM+4+d}, 0, v38, vcc")
    ST(1)
    A(f"s_waitcnt vmcnt({16 if wq_on else 1})")
    for q in range(4):
        A(f"v_lshlrev_b32 v{hF+2*q}, 16, v{hX+q}")
        A(f"v_and_b32 v{hF+2*q+1}, 0xffff0000, v{hX+q}")
    A(f"v_add_co_u32 v{hT}, vcc, 1, v{hE}")
    A("s_nop 1")
    A(f"v_addc_co_u32 v{hT+1}, vcc, 0, v{hE+1}, vcc")
    A(f"v_add_f32 v42, v{hF}, v{hF+1}")
    for q in range(2, 8):
        A(f"v_add_f32 v42, v42, v{hF+q}")
    allreduce(A, "v_add_f32", 42, 43)
    A(f"v_mul_f32 v42, {hex(f2u(1/512))}, v42")
    A(f"v_sub_f32 v44, v{hF}, v42")
    A("v_mul_f32 v45, v44, v44")
    for q in range(1, 8):
        A(f"v_sub_f32 v44, v{hF+q}, v42")
        A("v_fmac_f32 v45, v44, v44")
    allreduce(A, "v_add_f32", 45, 43)
    A(f"v_mul_f32 v45, {hex(f2u(1/512))}, v45")
    rne_hi(A, 42, 42)
    rne_hi(A, 45, 45)
    A(f"v_add_f32 v45, {hex(f2u(1e-5))}, v45")
    rne_hi(A, 45, 45)
    A("v_sqrt_f32 v45, v45")
    A("s_nop 0")
    rne_hi(A, 45, 45)
    A("v_rcp_f32 v46, v45")
    for q in range(8):
        A(f"v_sub_f32 v{hF+q}, v{hF+q}, v42")
        rne_hi(A, hF + q, hF + q)
        A(f"v_mul_f32 v44, v{hF+q}, v46")
        A(f"v_fma_f32 v47, -v44, v45, v{hF+q}")
        A(f"v_fma_f32 v44, v47, v46, v44")
        rne_hi(A, hF + q, 44)
    A("v_lshlrev_b32 v44, 5, v0")
    A(f"ds_write_b128 v44, v[{hF}:{hF+3}] offset:{L_XN}")
    A(f"ds_write_b128 v44, v[{hF+4}:{hF+7}] offset:{L_XN+16}")
    A("s_lshl_b32 s29, s22, 8")
    A("v_lshlrev_b32 v44, 6, v33")
    A("v_add_u32 v44, s29, v44")
    A("s_waitcnt lgkmcnt(0)")
    hXA = 128
    for q in range(4):
        A(f"ds_read_b128 v[{hXA+4*q}:{hXA+4*q+3}], v44 offset:{L_XN+16*q}")
    A("s_waitcnt lgkmcnt(0)")
    for i in range(16):
        A(f"v_cvt_pk_bf16_f32 v{hXA+i}, v{hXA+i}, v{hXA+i}")
    A("s_waitcnt vmcnt(0)")
    ST(2)
    hA = 144
    for i in range(16):
        a = hA + 4 * (i & 1)
        for d in range(4):
            A(f"v_and_b32 v{a+d}, v{hXA+i}, v{hM+d}")
        A("s_nop 1")
        c = "0" if i == 0 else f"v[{hD}:{hD+3}]"
        A(f"v_mfma_f32_16x16x32_bf16 v[{hD}:{hD+3}], v[{a}:{a+3}], v[{hW+4*i}:{hW+4*i+3}], {c}")
    A("s_lshl_b32 s29, s2, 10")
    A(f"s_add_u32 s29, s29, {WS_QP}")
    A("v_and_b32 v44, 1, v33")
    A("v_lshlrev_b32 v44, 5, v44")
    A("v_lshrrev_b32 v45, 1, v33")
    A("v_lshl_add_u32 v44, v45, 4, v44")
    A("v_lshl_add_u32 v6, v32, 6, v44")
    A("s_nop 3")
    def publish1(dreg, vaddr, soff):
        A(f"v_permlane32_swap_b32 v{dreg}, v{dreg+2}")
        A(f"v_permlane32_swap_b32 v{dreg+1}, v{dreg+3}")
        A(f"v_mov_b32 v50, v{hT}"); A(f"v_mov_b32 v51, v{hT+1}")
        A(f"v_mov_b32 v48, v{dreg}"); A(f"v_mov_b32 v49, v{dreg+1}")
        A(f"buffer_store_dwordx4 v[48:51], v{vaddr}, s[12:15], {soff} offen sc1")
    publish1(hD, 6, "s29")
    def poll(label, loads, nregs_tagpairs, extra_ok=None, sleep=0):
        A(f"s_mov_b32 s34, {POLL_LIMIT}")
        A.lab(label)
        loads()
        A("s_waitcnt vmcnt(0)")
        A("s_mov_b64 s[30:31], -1")
        for idx, tp in enumerate(nregs_tagpairs):
            A(f"v_cmp_eq_u64 vcc, v[{tp}:{tp+1}], v[{hT}:{hT+1}]")
            if extra_ok and idx in extra_ok:
                A(f"s_or_b64 vcc, vcc, {extra_ok[idx]}")
            A("s_and_b64 s[30:31], s[30:31], vcc")
        A("s_cmp_eq_u64 s[30:31], -1")
        A(f"s_cbranch_scc1 {label}_ok")
        if sleep: A(f"s_sleep {sleep}")
        A("s_sub_u32 s34, s34, 1")
        A("s_cmp_lg_u32 s34, 0")
        A(f"s_cbranch_scc1 {label}")
        A.lab(label + "_ok")
    hG = 64
    A("s_lshl_b32 s29, s21, 13")
    A(f"s_add_u32 s29, s29, {WS_QP}")
    def qloads():
        for jj in range(8):
            A(f"s_add_u32 s33, s29, {jj*1024}")
            A(f"buffer_load_dwordx4 v[{hG+4*jj}:{hG+4*jj+3}], v35, s[12:15], s33 offen sc1")
    if cheapq:
        A("v_lshlrev_b32 v45, 10, v0")
        A("v_add_u32 v45, 1008, v45")
        A(f"v_mov_b32 v46, {hex(OOBV)}")
        A("v_cmp_gt_u32 vcc, 8, v0")
        A("s_nop 1")
        A("v_cndmask_b32 v45, v46, v45, vcc")
        A("s_mov_b32 s52, 0xffffff00"); A("s_mov_b32 s53, -1")
        def qpre():
            A(f"buffer_load_dwordx4 v[{hG}:{hG+3}], v45, s[12:15], s29 offen sc1")
        poll("L_pq0", qpre, [hG + 2], extra_ok={0: "s[52:53]"}, sleep=psleep)
    if qsleep0: A(f"s_sleep {qsleep0}")
    poll("L_pq", qloads, [hG + 4 * jj + 2 for jj in range(8)], sleep=qsleep)
    A(f"v_add_f32 v44, v{hG}, v{hG+4}")
    A(f"v_add_f32 v45, v{hG+1}, v{hG+5}")
    for jj in range(2, 8):
        A(f"v_add_f32 v44, v44, v{hG+4*jj}")
        A(f"v_add_f32 v45, v45, v{hG+4*jj+1}")
    A("v_cvt_pk_bf16_f32 v44, v44, v45")
    A("v_lshlrev_b32 v45, 2, v0")
    A(f"ds_write_b32 v45, v44 offset:{L_Q}")
    A("s_waitcnt lgkmcnt(0)")
    ST(3)
    if qflag:
        A("v_mov_b32 v44, 1")
        A(f"ds_write_b32 v36, v44 offset:{L_FLAG}")
    else:
        A("s_barrier")
    if prio: A("s_setprio 0")
    def tlb_touch():
        npg = 8192 // tlbpf
        assert npg <= 64
        A(f"v_mul_u32_u24 v44, {tlbpf*1024}, v0")
        A(f"v_mov_b32 v45, {hex(OOBV)}")
        A(f"v_cmp_gt_u32 vcc, {npg}, v0")
        A("s_lshl_b32 s29, s21, 23")
        A("v_cndmask_b32 v44, v45, v44, vcc")
        A("s_mov_b32 s8, s40"); A("s_mov_b32 s9, s41"); A(f"s_mov_b32 s10, {hex(DEAD)}"); A("s_mov_b32 s11, 0x20000")
        A("buffer_load_dword v60, v44, s[8:11], s29 offen nt")
        A("s_mov_b32 s8, s42"); A("s_mov_b32 s9, s43")
        A("buffer_load_dword v61, v44, s[8:11], s29 offen nt")
    if tlbpf and tlbpos == 1: tlb_touch()

    A("s_and_b32 s29, s2, 7")
    A("s_lshl_b32 s29, s29, 1")
    A("s_bfe_u32 s30, s2, 0x10003")
    A("s_or_b32 s58, s29, s30")
    A("s_lshr_b32 s59, s2, 4")
    A("s_cmp_ge_u32 s58, 11")
    A("s_cbranch_scc1 L_nos1")
    if not ffn: A("s_branch L_nos1")
    A("s_mov_b32 s8, s44"); A("s_mov_b32 s9, s45"); A(f"s_mov_b32 s10, {512*2752}"); A("s_mov_b32 s11, 0x20000")
    A("s_mov_b32 s16, s46"); A("s_mov_b32 s17, s47"); A(f"s_mov_b32 s18, {512*2752}"); A("s_mov_b32 s19, 0x20000")
    A("s_and_b32 s31, s59, 1")
    A("s_lshr_b32 s30, s59, 1")
    A("s_lshl_b32 s30, s30, 6")
    A("s_add_u32 s30, s30, s31")
    A("v_lshlrev_b32 v44, 4, v33")
    A("v_add_u32 v44, s30, v44")
    A("v_lshlrev_b32 v47, 2, v44")
    A("v_mul_u32_u24 v44, 2752, v44")
    A("v_lshl_add_u32 v44, v32, 4, v44")
    A("s_lshl_b32 s33, s58, 7")
    A("s_lshl_b32 s34, s31, 5")
    A("s_sub_u32 s33, s33, s34")
    A("v_lshlrev_b32 v45, 3, v32")
    A("v_add_u32 v45, s33, v45")
    A("s_lshl_b32 s33, s33, 1")
    A("v_add_u32 v44, s33, v44")
    A(f"v_mov_b32 v46, {hex(OOBV)}")
    A("v_cmp_gt_u32 vcc, 1376, v45")
    A("s_nop 1")
    A("v_cndmask_b32 v44, v46, v44, vcc")
    for i in range(8):
        A(f"s_mov_b32 s33, {2*i*2752}")
        if ffn_s1:
            A(f"buffer_load_dwordx4 v[{64+4*i}:{64+4*i+3}], v44, s[8:11], s33 offen {ffn_nt}")
            A(f"buffer_load_dwordx4 v[{96+4*i}:{96+4*i+3}], v44, s[16:19], s33 offen {ffn_nt}")
    for q in range(4):
        A(f"ds_read2_b32 v[{128+2*q}:{129+2*q}], v47 offset0:{L_XN//4 + 4*q} offset1:{L_XN//4 + 4*q + 2}")
    for d in range(4):
        A(f"v_xor_b32 v{hM+4+d}, v{hM+4+d}, v{hM+d}")
    A("v_and_b32 v45, 1, v33")
    A("v_lshlrev_b32 v45, 5, v45")
    A("v_lshrrev_b32 v46, 1, v33")
    A("v_lshl_add_u32 v45, v46, 4, v45")
    A("v_and_b32 v46, 3, v32")
    A("v_lshl_add_u32 v45, v46, 6, v45")
    A("v_lshrrev_b32 v46, 2, v32")
    A("v_lshl_add_u32 v45, v46, 9, v45")
    A("s_mul_i32 s29, s59, 22528")
    A("s_lshl_b32 s30, s58, 11")
    A("s_add_u32 s29, s29, s30")
    A(f"s_add_u32 s29, s29, {WS_S1}")
    A("s_waitcnt lgkmcnt(0)")
    for i in range(8):
        A(f"v_cvt_pk_bf16_f32 v{128+i}, v{128+i}, v{128+i}")
    A("s_waitcnt vmcnt(0)")
    for i in range(8):
        for mtx in range(2):
            a = hA + 4 * mtx
            for d in range(4):
                A(f"v_and_b32 v{a+d}, v{128+i}, v{hM+4*mtx+d}")
            A("s_nop 1")
            c = "0" if (i == 0 and mtx == 0) else f"v[{hD}:{hD+3}]"
            w = 64 + 32 * mtx + 4 * i
            A(f"v_mfma_f32_16x16x32_bf16 v[{hD}:{hD+3}], v[{a}:{a+3}], v[{w}:{w+3}], {c}")
    A(f"v_mov_b32 v50, v{hT}"); A(f"v_mov_b32 v51, v{hT+1}")
    A(f"v_mov_b32 v54, v{hT}"); A(f"v_mov_b32 v55, v{hT+1}")
    A("s_nop 7")
    A(f"v_permlane32_swap_b32 v{hD}, v{hD+1}")
    A(f"v_permlane32_swap_b32 v{hD+2}, v{hD+3}")
    A("s_nop 1")
    A(f"v_mov_b32 v48, v{hD}"); A(f"v_mov_b32 v49, v{hD+1}")
    A(f"v_mov_b32 v52, v{hD+2}"); A(f"v_mov_b32 v53, v{hD+3}")
    if s1pub:
        A("buffer_store_dwordx4 v[48:51], v45, s[12:15], s29 offen sc1")
        A("buffer_store_dwordx4 v[52:55], v45, s[12:15], s29 offen offset:256 sc1")
    A.lab("L_nos1")

    A("s_mov_b32 s16, s38"); A("s_mov_b32 s17, s39"); A(f"s_mov_b32 s18, {4096*1024}"); A("s_mov_b32 s19, 0x20000")
    hWO = 160
    A("v_lshrrev_b32 v44, 3, v0")
    A("v_lshlrev_b32 v44, 14, v44")
    A("v_and_b32 v45, 7, v0")
    A("v_lshl_add_u32 v44, v45, 4, v44")
    A("s_lshl_b32 s29, s21, 17")
    A("s_lshl_b32 s30, s22, 7")
    A("s_add_u32 s29, s29, s30")
    for i in range(16):
        A(f"s_add_u32 s33, s29, {i*1024}")
        if wo_on: A(f"buffer_load_dwordx4 v[{hWO+4*i}:{hWO+4*i+3}], v44, s[16:19], s33 offen {nt_w}")
    A("v_lshrrev_b32 v44, 3, v0")
    A(f"v_mul_u32_u24 v44, {16*W_RS}, v44")
    A("v_and_b32 v45, 7, v0")
    A("v_lshl_add_u32 v44, v45, 4, v44")
    A("s_waitcnt vmcnt(0)")
    for i in range(16):
        A(f"ds_write_b128 v44, v[{hWO+4*i}:{hWO+4*i+3}] offset:{L_W + i*W_RS}")
        if i % 8 == 7: A("s_waitcnt lgkmcnt(0)")
    A(f"v_mul_u32_u24 v44, {8*W_RS}, v33")
    A("v_lshl_add_u32 v44, v32, 1, v44")
    for cg in range(4):
        for sx in range(4):
            for e in range(8):
                A(f"ds_read_u16 v{64+e}, v44 offset:{L_W + (32*sx + e)*W_RS + 32*cg}")
            A("s_waitcnt lgkmcnt(0)")
            for d in range(4):
                A(f"v_lshl_or_b32 v{hWO + 16*cg + 4*sx + d}, v{64+2*d+1}, 16, v{64+2*d}")

    A("s_cmp_lt_u32 s58, 11")
    A("s_cbranch_scc1 L_noffn")
    A("s_sub_u32 s35, s58, 11")
    A("s_lshl_b32 s35, s35, 4")
    A("s_add_u32 s35, s35, s59")
    A("s_cmp_ge_u32 s35, 43")
    A("s_cbranch_scc1 L_noffn")
    if not ffn or not s2on: A("s_branch L_noffn")
    hAG = 12
    hAU = 56
    def wait_prog(label, level):
        A(f"v_mov_b32 v46, {L_PROG}")
        A(f"s_mov_b32 s34, {POLL_LIMIT}")
        A.lab(label)
        A("ds_read_b128 v[64:67], v46")
        A("s_waitcnt lgkmcnt(0)")
        A("v_max3_u32 v64, v64, v65, v66")
        A("v_max_u32 v64, v64, v67")
        A("s_nop 0")
        A("v_readfirstlane_b32 s29, v64")
        A(f"s_cmp_ge_u32 s29, {level}")
        A(f"s_cbranch_scc1 {label}_ok")
        A("s_sleep 8")
        A("s_sub_u32 s34, s34, 1")
        A("s_cmp_lg_u32 s34, 0")
        A(f"s_cbranch_scc1 {label}")
        A.lab(label + "_ok")
    if s2lvl: wait_prog("L_w2", s2lvl)
    A("v_lshrrev_b32 v44, 5, v0")
    A(f"v_mul_u32_u24 v44, {22528+512}, v44")
    A("v_and_b32 v45, 31, v0")
    A("v_lshl_add_u32 v44, v45, 4, v44")
    A("s_lshl_b32 s29, s35, 9")
    A(f"s_add_u32 s29, s29, {WS_S1}")
    def s1loads():
        for k in range(8):
            A(f"s_add_u32 s33, s29, {2*k*22528}")
            A(f"buffer_load_dwordx4 v[{64+4*k}:{64+4*k+3}], v44, s[12:15], s33 offen sc1")
    if s1poll: poll("L_ps1", s1loads, [64 + 4 * k + 2 for k in range(8)], sleep=s1sleep)
    A("v_add_f32 v12, v64, v68"); A("v_add_f32 v13, v65, v69")
    for k in range(2, 8):
        A(f"v_add_f32 v12, v12, v{64+4*k}"); A(f"v_add_f32 v13, v13, v{64+4*k+1}")
    allreduce(A, "v_add_f32", 12, 46, rors=(), x16=False)
    allreduce(A, "v_add_f32", 13, 46, rors=(), x16=False)
    rne_hi(A, 12, 12)
    silu(A, 12, 12, 46)
    rne_hi(A, 12, 12)
    rne_hi(A, 13, 13)
    A("v_mul_f32 v12, v12, v13")
    rne_hi(A, 12, 12)
    A("v_bfe_u32 v46, v45, 2, 2")
    A("v_lshlrev_b32 v46, 3, v46")
    A("v_bfe_u32 v47, v45, 1, 1")
    A("v_lshl_add_u32 v46, v47, 2, v46")
    A("v_lshrrev_b32 v47, 4, v45")
    A("v_lshl_add_u32 v46, v47, 1, v46")
    A("v_and_b32 v47, 1, v45")
    A("v_add_u32 v46, v46, v47")
    A("v_lshlrev_b32 v45, 2, v46")
    A(f"ds_write_b32 v45, v12 offset:{L_H}")
    A("s_mov_b32 s8, s48"); A("s_mov_b32 s9, s49"); A(f"s_mov_b32 s10, {1376*1024}"); A("s_mov_b32 s11, 0x20000")
    A("s_lshl_b32 s31, s35, 15")
    A(f"v_mov_b32 v47, {L_H}")
    for q in range(8): A(f"v_mov_b32 v{hAU+q}, 0")
    A("s_mov_b32 s32, 4")
    A("s_waitcnt lgkmcnt(0)")
    A.lab("L_f2")
    for i in range(8):
        A(f"s_add_u32 s33, s31, {i*1024}")
        if ffn_s2: A(f"buffer_load_dwordx4 v[{64+4*i}:{64+4*i+3}], v35, s[8:11], s33 offen {ffn_nt}")
    A("ds_read_b128 v[128:131], v47")
    A("ds_read_b128 v[132:135], v47 offset:16")
    A("v_add_u32 v47, 32, v47")
    A(f"s_add_u32 s31, s31, {8*1024}")
    A("s_waitcnt vmcnt(0) lgkmcnt(0)")
    for i in range(8 if ffn_comp else 0):
        for q in range(4):
            r = 64 + 4 * i + q
            A(f"v_lshlrev_b32 v44, 16, v{r}")
            A(f"v_and_b32 v45, 0xffff0000, v{r}")
            A(f"v_fmac_f32 v{hAU+2*q}, v44, v{128+i}")
            A(f"v_fmac_f32 v{hAU+2*q+1}, v45, v{128+i}")
    A("s_sub_u32 s32, s32, 1")
    A("s_cmp_lg_u32 s32, 0")
    A("s_cbranch_scc1 L_f2")
    A("v_lshlrev_b32 v44, 5, v0")
    A(f"ds_write_b128 v44, v[{hAU}:{hAU+3}] offset:{L_FT}")
    A(f"ds_write_b128 v44, v[{hAU+4}:{hAU+7}] offset:{L_FT+16}")
    A("v_lshlrev_b32 v44, 3, v0")
    A("s_waitcnt lgkmcnt(0)")
    for q in range(4):
        A(f"ds_read_b64 v[{64+4*q}:{64+4*q+1}], v44 offset:{L_FT + 512*q}")
        A(f"v_mov_b32 v{64+4*q+2}, v{hT}"); A(f"v_mov_b32 v{64+4*q+3}, v{hT+1}")
    A("s_lshl_b32 s29, s35, 12")
    A(f"s_add_u32 s29, s29, {WS_FP}")
    A("s_waitcnt lgkmcnt(0)")
    for q in range(4 if fppub else 0):
        A(f"buffer_store_dwordx4 v[{64+4*q}:{64+4*q+3}], v35, s[12:15], s29 offen offset:{1024*q} sc1")
    A.lab("L_noffn")

    def cons_check(lab):
        if p2fast:
            A("s_lshl_b32 s66, s22, 2")
            A("s_add_u32 s66, s66, s21")
            A("s_cmp_ge_u32 s21, 4")
        else:
            A("s_mov_b32 s66, s21")
            A("s_and_b32 s29, s21, 7")
            A("s_cmp_lg_u32 s29, s22")
        A(f"s_cbranch_scc1 {lab}")
    def emit_fp():
        cons_check("L_nocons1")
        hGG = 56
        A("v_lshrrev_b32 v45, 3, v0")
        A("v_lshlrev_b32 v45, 12, v45")
        A("v_and_b32 v46, 7, v0")
        A("v_lshl_add_u32 v45, v46, 4, v45")
        A("s_lshl_b32 s29, s66, 7")
        A(f"s_add_u32 s29, s29, {WS_FP}")
        A(f"v_mov_b32 v47, {hex(OOBV)}")
        A("v_cmp_gt_u32 vcc, 24, v0")
        A("s_nop 1")
        A("v_cndmask_b32 v47, v47, v45, vcc")
        A("s_mov_b32 s52, 0xff000000"); A("s_mov_b32 s53, -1")
        def floads():
            for k in range(6):
                A(f"s_add_u32 s33, s29, {k*8*4096}")
                va = 47 if k == 5 else 45
                A(f"buffer_load_dwordx4 v[{64+4*k}:{64+4*k+3}], v{va}, s[12:15], s33 offen sc1")
        if ffn and not gexp:
            poll("L_pf", floads, [64 + 4 * k + 2 for k in range(6)], extra_ok={5: "s[52:53]"}, sleep=gsleep)
        A("v_add_f32 v56, v64, v68"); A("v_add_f32 v57, v65, v69")
        for k in range(2, 6):
            A(f"v_add_f32 v56, v56, v{64+4*k}"); A(f"v_add_f32 v57, v57, v{64+4*k+1}")
        allreduce(A, "v_add_f32", 56, 44, rors=(8,))
        allreduce(A, "v_add_f32", 57, 44, rors=(8,))
        for r in (56, 57):
            rne_hi(A, r, r)
            silu(A, r, r, 44)
            rne_hi(A, r, r)
        A("s_mov_b32 s8, s4"); A("s_mov_b32 s9, s5"); A("s_mov_b32 s10, 1024"); A("s_mov_b32 s11, 0x20000")
        A("s_lshl_b32 s29, s66, 5")
        A("v_lshlrev_b32 v46, 2, v46")
        A("buffer_load_dword v58, v46, s[8:11], s29 offen")
        A("s_waitcnt vmcnt(0)")
        A("v_and_b32 v59, 0xffff0000, v58")
        A("v_lshlrev_b32 v58, 16, v58")
        A.lab("L_nocons1")
    if early_fp: emit_fp()
    if eep:
        A("s_cmp_lg_u32 s2, 0")
        A("s_cbranch_scc1 L_noep")
        A("v_lshlrev_b32 v45, 10, v0")
        def eloads():
            for k in range(4):
                A(f"s_mov_b32 s33, {WS_QP + k*64*1024}")
                A(f"buffer_load_dwordx4 v[{64+4*k}:{64+4*k+3}], v45, s[12:15], s33 offen sc1")
        poll("L_pe", eloads, [64 + 4 * k + 2 for k in range(4)], sleep=8)
        A("s_mov_b64 exec, 1")
        A(f"buffer_store_dwordx2 v[{hT}:{hT+1}], v36, s[12:15], 0 offen sc1")
        A("s_mov_b64 exec, -1")
        A.lab("L_noep")
    A("s_lshl_b32 s29, s21, 7")
    A(f"s_add_u32 s29, s29, {WS_TICK}")
    A("v_mov_b32 v44, s29")
    A(f"v_mov_b32 v45, {hex(OOBV)}")
    A("v_cmp_eq_u32 vcc, 0, v0")
    A(f"v_mov_b32 v46, {L_PROG}")
    A(f"v_mov_b32 v47, {L_TK}")
    A("v_cndmask_b32 v44, v45, v44, vcc")
    A(f"s_mov_b32 s36, {NS - LEAD}")
    A("s_mov_b32 s37, 0")
    A.lab("L_tk")
    A(f"s_mov_b32 s34, {POLL_LIMIT}")
    A.lab("L_tkw")
    A("ds_read_b128 v[64:67], v46")
    A("s_waitcnt lgkmcnt(0)")
    A("v_max3_u32 v64, v64, v65, v66")
    A("v_max_u32 v64, v64, v67")
    A("s_nop 0")
    A("v_readfirstlane_b32 s29, v64")
    A("s_cmp_ge_u32 s29, s36")
    A("s_cbranch_scc1 L_tkgo")
    A(f"s_sleep {psleep}")
    A("s_sub_u32 s34, s34, 1")
    A("s_cmp_lg_u32 s34, 0")
    A("s_cbranch_scc1 L_tkw")
    A.lab("L_tkgo")
    A("v_mov_b32 v65, 4")
    A("buffer_atomic_add v65, v44, s[12:15], 0 offen sc0 sc1")
    A("s_waitcnt vmcnt(0)")
    A("v_readfirstlane_b32 s29, v65")
    A("s_cmp_lt_u32 s37, 180")
    A(f"s_cselect_b32 s29, s29, {NI - 32*NS}")
    A("v_mov_b32 v65, s29")
    A("ds_write_b32 v47, v65")
    A("v_add_u32 v47, 4, v47")
    A("s_add_u32 s36, s36, 1")
    A("s_add_u32 s37, s37, 1")
    A(f"s_cmp_lt_u32 s29, {NI - 32*NS}")
    A("s_cbranch_scc1 L_tk")
    for d in range(D - 1):
        A(f"ds_write_b32 v47, v65 offset:{4*d}")

    if not early_fp: emit_fp()

    def engine(label, nitems, nslots, slot0, vaddr, sbase, shift, check, on_valid, smiss_init, alt=None):
        sM, sC, sT, sO, sN = 60, 61, 62, 63, 34
        sI = 86
        A(f"s_mov_b32 s{sM}, {smiss_init}")
        A(f"s_mov_b32 s{sC}, 0")
        A(f"s_mov_b32 s{sN}, {POLL_LIMIT}")
        def issue(k):
            A(f"s_lshl_b32 s{sT}, -1, s{sC}")
            A(f"s_and_b32 s{sT}, s{sT}, s{sM}")
            A(f"s_cselect_b32 s{sT}, s{sT}, s{sM}")
            A(f"s_ff1_i32_b32 s{sI+k}, s{sT}")
            A(f"s_add_u32 s{sC}, s{sI+k}, 1")
            A(f"s_lshl_b32 s{sO}, s{sI+k}, {shift}")
            A(f"s_add_u32 s{sO}, s{sO}, {sbase}")
            r = slot0 + 4 * k
            A(f"buffer_load_dwordx4 v[{r}:{r+3}], {vaddr}, s[12:15], s{sO} offen sc1")
        for k in range(nslots): issue(k)
        A.lab(label)
        for k in range(nslots):
            r = slot0 + 4 * k
            A(f"s_waitcnt vmcnt({nslots-1})")
            check(r)
            A(f"s_lshl_b32 s{sT}, 1, s{sI+k}")
            A("s_cmp_eq_u64 vcc, -1")
            A(f"s_cselect_b32 s{sT}, s{sT}, 0")
            A(f"s_and_b32 s{sT}, s{sT}, s{sM}")
            A(f"s_cbranch_scc0 {label}_s{k}")
            A(f"s_xor_b32 s{sM}, s{sM}, s{sT}")
            on_valid(r)
            A(f"s_cmp_eq_u32 s{sM}, 0")
            A(f"s_cbranch_scc1 {label}_ok")
            A.lab(f"{label}_s{k}")
            issue(k)
        A(f"s_sub_u32 s{sN}, s{sN}, 1")
        if alt:
            A(f"s_and_b32 s{sT}, s{sN}, {alt[0]-1}")
            A(f"s_cselect_b32 {sbase}, {alt[1]}, {alt[2]}")
        A(f"s_cmp_lg_u32 s{sN}, 0")
        A(f"s_cbranch_scc1 {label}")
        A.lab(label + "_ok")
    A("v_mov_b32 v44, 0")
    A("v_lshlrev_b32 v45, 3, v0")
    A("v_cmp_eq_u32 s[52:53], 1, v33")
    A("v_cmp_eq_u32 s[54:55], 2, v33")
    A("v_cmp_eq_u32 s[56:57], 3, v33")
    A("v_lshlrev_b32 v46, 4, v33")
    A("v_lshlrev_b32 v47, 2, v0")
    A(f"s_mov_b32 s30, {hex(f2u(CSC))}")
    A(f"s_mov_b32 s31, {hex(f2u(-CSC))}")
    A("s_lshl_b32 s29, s2, 10")
    A(f"s_add_u32 s29, s29, {WS_P1}")
    A("s_lshl_b32 s32, s21, 13")
    A(f"s_add_u32 s32, s32, {WS_P1}")
    A("s_lshl_b32 s35, 1, s22")
    A("s_xor_b32 s35, s35, 0xff")
    hQ = 104
    if p1q:
        for i in range(7):
            A(f"s_add_u32 s{40+i}, s22, {i+1}")
            A(f"s_and_b32 s{40+i}, s{40+i}, 7")
            A(f"s_lshl_b32 s{40+i}, s{40+i}, 10")
            A(f"s_add_u32 s{40+i}, s{40+i}, s32")
    A("s_waitcnt vmcnt(0)")
    A("s_barrier")
    if prio: A("s_setprio 3")
    ST(4)
    for w in range(4):
        A(f"ds_read_b32 v{80+w}, v44 offset:{L_ML+32*w+16}")
    for w in range(4):
        A(f"ds_read_b128 v[{64+4*w}:{64+4*w+3}], v44 offset:{L_ML+32*w}")
    for w in range(4):
        A(f"ds_read_b64 v[{84+2*w}:{84+2*w+1}], v45 offset:{L_PART+512*w}")
    if p1q:
        for i in range(7):
            A(f"buffer_load_dwordx4 v[{hQ+4*i}:{hQ+4*i+3}], v35, s[12:15], s{40+i} offen sc1")
    A("s_waitcnt lgkmcnt(8)")
    A("v_max3_f32 v92, v80, v81, v82")
    A("v_max_f32 v92, v92, v83")
    A("v_mul_f32 v93, s31, v92")
    for w in range(4):
        A(f"v_fma_f32 v{80+w}, v{80+w}, s30, v93")
    for w in range(4):
        A(f"v_exp_f32 v{80+w}, v{80+w}")
    A("s_waitcnt lgkmcnt(4)")
    for w in range(4):
        A(f"v_add_f32 v{64+4*w}, v{64+4*w}, v{64+4*w+1}")
        A(f"v_add_f32 v{64+4*w+2}, v{64+4*w+2}, v{64+4*w+3}")
    for w in range(4):
        A(f"v_add_f32 v{64+4*w}, v{64+4*w}, v{64+4*w+2}")
    A("v_mul_f32 v94, v64, v80")
    for w in range(1, 4):
        A(f"v_fmac_f32 v94, v{64+4*w}, v{80+w}")
    A("s_waitcnt lgkmcnt(0)")
    A("v_rcp_f32 v95, v94")
    A("v_log_f32 v96, v94")
    A("v_mul_f32 v98, v84, v80")
    A("v_mul_f32 v99, v85, v80")
    for w in range(1, 4):
        A(f"v_fmac_f32 v98, v{84+2*w}, v{80+w}")
        A(f"v_fmac_f32 v99, v{85+2*w}, v{80+w}")
    A("v_sub_f32 v96, v96, v93")
    A("v_mul_f32 v98, v98, v95")
    A("v_mul_f32 v99, v99, v95")
    A(f"v_mov_b32 v51, v{hT}")
    A("v_mov_b32 v50, v96")
    A("v_mov_b32 v48, v98"); A("v_mov_b32 v49, v99")
    A("buffer_store_dwordx4 v[48:51], v35, s[12:15], s29 offen sc1")
    A("v_mov_b32 v97, 1.0")
    def chk1(r): A(f"v_cmp_eq_u32 vcc, v{r+3}, v{hT}")
    def val1(r):
        A(f"v_max_f32 v100, v96, v{r+2}")
        A(f"v_sub_f32 v101, v96, v100")
        A(f"v_sub_f32 v102, v{r+2}, v100")
        A("v_exp_f32 v101, v101")
        A("v_exp_f32 v102, v102")
        A("v_mov_b32 v96, v100")
        A("v_mul_f32 v98, v98, v101")
        A("v_mul_f32 v99, v99, v101")
        A("v_fma_f32 v97, v97, v101, v102")
        A(f"v_fmac_f32 v98, v{r}, v102")
        A(f"v_fmac_f32 v99, v{r+1}, v102")
    if p1q:
        A("s_waitcnt vmcnt(1)")
        A("s_mov_b64 s[60:61], -1")
        for i in range(7):
            A(f"v_cmp_eq_u32 vcc, v{hQ+4*i+3}, v{hT}")
            A("s_and_b64 s[60:61], s[60:61], vcc")
        A("s_cmp_eq_u64 s[60:61], -1")
        A("s_cbranch_scc0 L_e1_slow")
        L_ = lambda i: hQ + 4 * i + 2
        A(f"v_max3_f32 v100, v96, v{L_(0)}, v{L_(1)}")
        A(f"v_max3_f32 v101, v{L_(2)}, v{L_(3)}, v{L_(4)}")
        A(f"v_max3_f32 v100, v100, v{L_(5)}, v{L_(6)}")
        A("v_max_f32 v100, v100, v101")
        A("v_sub_f32 v96, v96, v100")
        for i in range(7): A(f"v_sub_f32 v{L_(i)}, v{L_(i)}, v100")
        A("v_exp_f32 v96, v96")
        for i in range(7): A(f"v_exp_f32 v{L_(i)}, v{L_(i)}")
        A("v_mul_f32 v98, v98, v96")
        A("v_mul_f32 v99, v99, v96")
        A(f"v_add_f32 v97, v96, v{L_(0)}")
        A(f"v_add_f32 v101, v{L_(1)}, v{L_(2)}")
        A(f"v_add_f32 v102, v{L_(3)}, v{L_(4)}")
        A(f"v_add_f32 v103, v{L_(5)}, v{L_(6)}")
        for i in range(7):
            A(f"v_fmac_f32 v98, v{hQ+4*i}, v{L_(i)}")
            A(f"v_fmac_f32 v99, v{hQ+4*i+1}, v{L_(i)}")
        A("v_add_f32 v97, v97, v101")
        A("v_add_f32 v102, v102, v103")
        A("v_add_f32 v97, v97, v102")
        A("s_branch L_e1_done")
        A.lab("L_e1_slow")
    engine("L_e1", 8, E1, 64, "v35", "s32", 10, chk1, val1, "s35")
    if p1q: A.lab("L_e1_done")
    ST(5)
    A("v_rcp_f32 v97, v97")
    A("s_nop 0")
    A("v_mul_f32 v98, v98, v97")
    A("v_mul_f32 v99, v99, v97")
    A("v_cvt_pk_bf16_f32 v98, v98, v99")
    A(f"ds_write_b32 v47, v98 offset:{L_O}")
    A("s_lshl_b32 s29, s21, 12")
    A("s_lshl_b32 s30, s22, 9")
    A("s_add_u32 s29, s29, s30")
    A(f"s_add_u32 s29, s29, {WS_P2}")
    A("v_lshlrev_b32 v45, 3, v0")
    A("s_waitcnt lgkmcnt(0)")
    hA2, hD2 = 104, 128
    for sx in range(4):
        A(f"ds_read_b128 v[{hA2+4*sx}:{hA2+4*sx+3}], v46 offset:{L_O + 64*sx}")
    for sx in range(4):
        A(f"s_waitcnt lgkmcnt({3-sx})")
        for cg in range(4):
            c = "0" if sx == 0 else f"v[{hD2+4*cg}:{hD2+4*cg+3}]"
            A(f"v_mfma_f32_16x16x32_bf16 v[{hD2+4*cg}:{hD2+4*cg+3}], v[{hA2+4*sx}:{hA2+4*sx+3}], v[{hWO+16*cg+4*sx}:{hWO+16*cg+4*sx+3}], {c}")
    A(f"v_mov_b32 v50, v{hT}"); A(f"v_mov_b32 v51, v{hT+1}")
    A("s_nop 5")
    A(f"v_cndmask_b32 v48, v{hD2}, v{hD2+4}, s[52:53]")
    A(f"v_cndmask_b32 v48, v48, v{hD2+8}, s[54:55]")
    A(f"v_cndmask_b32 v48, v48, v{hD2+12}, s[56:57]")
    A("s_nop 1")
    A("v_mov_b32_dpp v49, v48 quad_perm:[1,0,3,2] row_mask:0xf bank_mask:0xf")
    A("s_mov_b32 exec_lo, 0x55555555")
    A("s_mov_b32 exec_hi, 0x55555555")
    if p2fast:
        A(f"s_add_u32 s30, s29, {WS_P2F - WS_P2}")
        A("buffer_store_dwordx4 v[48:51], v45, s[12:15], s30 offen")
    A("buffer_store_dwordx4 v[48:51], v45, s[12:15], s29 offen sc1")
    A("s_mov_b64 exec, -1")
    ST(6)
    cons_check("L_hend")
    A("v_lshrrev_b32 v45, 3, v0")
    A("v_lshlrev_b32 v45, 12, v45")
    A("v_and_b32 v46, 7, v0")
    A("v_lshl_add_u32 v45, v46, 4, v45")
    A("s_lshl_b32 s32, s66, 7")
    A(f"s_add_u32 s32, s32, {WS_P2}")
    if p2fast:
        A("s_mov_b32 s65, s32")
        A(f"s_add_u32 s64, s32, {WS_P2F - WS_P2}")
        A("s_mov_b32 s32, s64")
    A("v_mov_b32 v52, 0"); A("v_mov_b32 v53, 0")
    def chk2(r): A(f"v_cmp_eq_u64 vcc, v[{r+2}:{r+3}], v[{hT}:{hT+1}]")
    def val2(r):
        A(f"v_add_f32 v52, v52, v{r}")
        A(f"v_add_f32 v53, v53, v{r+1}")
    engine("L_e2", 4, E2, 224, "v45", "s32", 15, chk2, val2, "15", alt=((p2per, "s64", "s65") if p2fast else None))
    A("v_mov_b32 v48, v52"); A("v_mov_b32 v49, v53")
    allreduce(A, "v_add_f32", 48, 44, rors=(8,))
    allreduce(A, "v_add_f32", 49, 44, rors=(8,))
    for (r, g, x) in ((48, 56, 58), (49, 57, 59)):
        rne_hi(A, r, r)
        A(f"v_mul_f32 v{r}, v{r}, v{g}")
        rne_hi(A, r, r)
        A(f"v_add_f32 v{r}, v{r}, v{x}")
    A("v_cvt_pk_bf16_f32 v48, v48, v49")
    A("s_mov_b32 s8, s50"); A("s_mov_b32 s9, s51"); A("s_mov_b32 s10, 1024"); A("s_mov_b32 s11, 0x20000")
    A("s_lshl_b32 s29, s66, 5")
    A("v_lshlrev_b32 v46, 2, v46")
    A("s_mov_b64 exec, 0xff")
    A(f"buffer_store_dword v48, v46, s[8:11], s29 offen {outpol}")
    if not eep:
        A("s_cmp_lg_u32 s66, 0")
        A("s_cbranch_scc1 L_hend")
        A("s_mov_b64 exec, 1")
        A(f"buffer_store_dwordx2 v[{hT}:{hT+1}], v36, s[12:15], 0 offen sc1")
    A.lab("L_hend")
    A("s_mov_b64 exec, -1")
    A("s_waitcnt vmcnt(0)")
    if stamp:
        stamp_out(A, 1)
    A.lab("L_end")
    A("s_endpgm")

    head = HDR + f"; @launch grid=(256,1,1) block=({NW*64},1,1) lds={LDS_BYTES}\n" + f""".amdgcn_target "amdgcn-amd-amdhsa--gfx950"
.text
.globl {NAME}_kernel
.p2align 8
.type {NAME}_kernel,@function
{NAME}_kernel:
"""
    foot = f""".section .rodata,"a"
.p2align 6
.amdhsa_kernel {NAME}_kernel
  .amdhsa_next_free_vgpr 256
  .amdhsa_next_free_sgpr 102
  .amdhsa_accum_offset 256
  .amdhsa_group_segment_fixed_size 0
  .amdhsa_kernarg_size 96
  .amdhsa_user_sgpr_count 2
  .amdhsa_user_sgpr_kernarg_segment_ptr 1
  .amdhsa_system_sgpr_workgroup_id_x 1
.end_amdhsa_kernel
"""
    return head + A.text() + foot

def stamp_out(A, helper):
    A("s_memrealtime s[84:85]")
    A("s_waitcnt lgkmcnt(0)")
    A("s_mul_i32 s29, s2, 5")
    A("s_add_u32 s29, s29, s20")
    A("s_lshl_b32 s29, s29, 5")
    A(f"s_add_u32 s29, s29, {WS_DBG}")
    for i in range(8):
        A(f"v_mov_b32 v{8+i}, s{70+2*i}")
    A("v_mov_b32 v16, s29")
    A("s_mov_b64 exec, 1")
    A("global_store_dwordx4 v16, v[8:11], s[24:25]")
    A("global_store_dwordx4 v16, v[12:15], s[24:25] offset:16")
    A("s_waitcnt vmcnt(0)")

if __name__ == "__main__":
    kw = eval("dict(" + (sys.argv[2] if len(sys.argv) > 2 else "") + ")")
    open(sys.argv[1], "w").write(gen(**kw))
```
